```python
import torch

def _softmax(x, axis=-1):
    return torch.softmax(x, dim=axis)
def _gelu(x):
    return torch.nn.functional.gelu(x, approximate="tanh")
def _silu(x):
    return torch.nn.functional.silu(x)
def _sigmoid(x):
    return torch.sigmoid(x)
def _layernorm(x, axis=-1, eps=1e-5):
    m = x.mean(dim=axis, keepdim=True)
    v = x.var(dim=axis, keepdim=True, unbiased=False)
    return (x - m) / torch.sqrt(v + eps)
def _scatter_add(tgt, idx, src, axis=0):
    return tgt.clone().index_add_(axis, idx, src)
def _segment_sum(src, seg, n):
    out = torch.zeros((n,) + src.shape[1:], dtype=src.dtype)
    return out.index_add_(0, seg, src)
def _pad(x, pw):
    flat = tuple(v for pair in reversed(pw) for v in pair)
    return torch.nn.functional.pad(x, flat)

kernel_name = 'parallel_sum__grouped_kv_mqa__geglu_ffn__prompt'

def setup_inputs():

    _w = (lambda a: (lambda t: t.to(torch.bfloat16) if t.is_floating_point() else t)(torch.as_tensor(a)))
    def _A_setup():
        B, S, D, H = 1, 2048, 576, 32
        Dh = D // H
        return {
            "x": _w((lambda *s: torch.randn(*s, dtype=torch.bfloat16) * 0.05)(B, S, D)),
            "wq": _w((lambda *s: torch.randn(*s, dtype=torch.bfloat16) * 0.2)(D, H * Dh)),
            "wk": _w((lambda *s: torch.randn(*s, dtype=torch.bfloat16) * 0.2)(D, Dh)),
            "wv": _w((lambda *s: torch.randn(*s, dtype=torch.bfloat16) * 0.1)(D, Dh)),
            "wo": _w((lambda *s: torch.randn(*s, dtype=torch.bfloat16) * 0.1)(H * Dh, D)),
        }
    _A_in = _A_setup()

    def _B_setup():
        B, S, D, F = 1, 2048, 576, 4608
        return {
            "x": _w((lambda *s: torch.randn(*s, dtype=torch.bfloat16) * 0.05)(B, S, D)),
            "w_gate": _w((lambda *s: torch.randn(*s, dtype=torch.bfloat16) * 0.1)(D, F)),
            "w_up": _w((lambda *s: torch.randn(*s, dtype=torch.bfloat16) * 0.1)(D, F)),
            "w_down": _w((lambda *s: torch.randn(*s, dtype=torch.bfloat16) * 0.1)(F, D)),
        }
    _B_in = _B_setup()

    return {
        "A_x": _A_in["x"],
        "A_wq": _A_in["wq"],
        "A_wk": _A_in["wk"],
        "A_wv": _A_in["wv"],
        "A_wo": _A_in["wo"],
        "B_x": _B_in["x"],
        "B_w_gate": _B_in["w_gate"],
        "B_w_up": _B_in["w_up"],
        "B_w_down": _B_in["w_down"],
    }

def reference(A_x, A_wq, A_wk, A_wv, A_wo, B_x, B_w_gate, B_w_up, B_w_down):
    def _A_ref(x, wq, wk, wv, wo):
        B, S, D = x.shape
        H = 32
        Dh = D // H
        q = (lambda x, *d: x.permute(*d))((x @ wq).reshape(B, S, H, Dh), 0, 2, 1, 3)
        k = x @ wk
        v = x @ wv
        scores = torch.einsum("bhqd,bkd->bhqk", q, k) * (Dh ** -0.5)
        p = _softmax(scores, axis=-1)
        o = torch.einsum("bhqk,bkd->bhqd", p, v)
        return (lambda x, *d: x.permute(*d))(o, 0, 2, 1, 3).reshape(B, S, H * Dh) @ wo

    def _B_ref(x, w_gate, w_up, w_down):
        return (_gelu(x @ w_gate) * (x @ w_up)) @ w_down

    x = A_x
    xn = _layernorm(x, axis=-1)
    return x + _A_ref(xn, A_wq, A_wk, A_wv, A_wo) + _B_ref(xn, B_w_gate, B_w_up, B_w_down)
```

```python
import re

REG_RE = re.compile(r'\b([vas])\[(\d+):(\d+)\]|\b([vas])(\d+)\b|\b(vcc|exec|m0|scc)\b')


def regs_of(op):
    out = []
    for m in REG_RE.finditer(op):
        if m.group(1):
            out += [(m.group(1), i) for i in range(int(m.group(2)), int(m.group(3)) + 1)]
        elif m.group(4):
            out.append((m.group(4), int(m.group(5))))
        else:
            out.append((m.group(6), 0))
    return out


TRANS = ('v_exp_', 'v_log_', 'v_rcp_', 'v_rsq_', 'v_sqrt_', 'v_sin_', 'v_cos_')
MFMA_PASSES = {'32x32x16': 8, '32x32x8': 8, '16x16x32': 4, '16x16x16': 4, '32x32x4_2b': 16, '32x32x32': 8}


class Ins:
    __slots__ = ('text', 'op', 'kind', 'rd', 'wr', 'passes', 'srcc', 'ab', 'tag', 'opt', 'pseudo', 'arg', 'wide_store')

    def __init__(self, text, tag=None, opt=False):
        self.text = text
        self.tag = tag
        self.opt = opt
        self.pseudo = None
        self.arg = None
        self.passes = 0
        self.srcc = []
        self.ab = []
        self.wide_store = []
        t = text.split(';')[0].strip()
        if t.endswith(':') or t.startswith('.') or not t:
            self.op = ''
            self.kind = 'label'
            self.rd = []
            self.wr = []
            return
        parts = t.split(None, 1)
        op = self.op = parts[0]
        rest = parts[1] if len(parts) > 1 else ''
        ops = [x.strip() for x in rest.split(',')]
        R = [regs_of(x) for x in ops]
        flat = lambda L: [r for x in L for r in x]
        if op.startswith('v_mfma') or op.startswith('v_smfmac'):
            self.kind = 'mfma'
            for k, p in MFMA_PASSES.items():
                if '_' + k + '_' in op:
                    self.passes = p
            assert self.passes, op
            self.wr = R[0]
            if op.startswith('v_smfmac'):
                self.srcc = R[0]
                self.ab = R[1] + R[2] + R[3]
            else:
                self.srcc = R[3]
                self.ab = R[1] + R[2]
            self.rd = self.srcc + self.ab
        elif op.startswith('ds_'):
            if op.startswith('ds_read') or op.startswith('ds_bpermute'):
                self.kind = 'ds_read'
                self.wr = R[0]
                self.rd = flat(R[1:])
            else:
                self.kind = 'ds_write'
                self.wr = []
                self.rd = flat(R)
        elif op.startswith('buffer_') or op.startswith('global_'):
            if op in ('buffer_inv', 'buffer_wbl2'):
                self.kind = 'vmem'
                self.rd = []
                self.wr = []
            elif re.search(r'\blds\b', rest) or '_lds_' in op:
                self.kind = 'vmem'
                self.wr = []
                self.rd = flat(R) + [('m0', 0)]
            elif '_load' in op:
                self.kind = 'vmem'
                self.wr = R[0]
                self.rd = flat(R[1:])
                if 'd16' in op:
                    pass
            else:
                self.kind = 'vmem'
                self.wr = []
                self.rd = flat(R)
                if 'x4' in op or 'x3' in op:
                    self.wide_store = R[0] if op.startswith('buffer_') else R[1]
        elif op.startswith('s_load') or op in ('s_memtime', 's_memrealtime'):
            self.kind = 'smem'
            self.wr = R[0]
            self.rd = flat(R[1:])
        elif op.startswith('v_'):
            self.kind = 'valu'
            if op.startswith(TRANS):
                self.kind = 'trans'
            elif op.startswith('v_dot2'):
                self.kind = 'dot'
            if op.startswith('v_cmp'):
                self.wr = R[0]
                self.rd = flat(R[1:])
            elif op.startswith('v_permlane') and 'swap' in op:
                self.wr = R[0] + R[1]
                self.rd = R[0] + R[1]
            elif '_co_' in op:
                self.wr = R[0] + R[1]
                self.rd = flat(R[2:])
            else:
                self.wr = R[0]
                self.rd = flat(R[1:])
                if op.startswith(('v_fmac', 'v_dot2c', 'v_writelane')):
                    self.rd = self.rd + R[0]
        elif op.startswith('s_'):
            self.kind = 'salu'
            if op.startswith(('s_cmp', 's_cbranch', 's_branch', 's_waitcnt', 's_nop', 's_barrier', 's_endpgm', 's_sleep', 's_setprio', 's_setpc')):
                self.wr = []
                self.rd = flat(R)
            else:
                self.wr = R[0]
                self.rd = flat(R[1:])
                if 'saveexec' in op:
                    self.wr = self.wr + [('exec', 0)]
        else:
            raise ValueError(text)

    def states(self):
        if self.kind == 'label' or self.pseudo:
            return 0
        if self.op == 's_nop':
            return int(self.text.split()[1]) + 1
        return 1

    def is_valu(self):
        return self.kind in ('valu', 'trans', 'dot')


def cost(text):
    op = text.split()[0]
    if op.startswith(TRANS) or op.startswith('v_permlane'):
        return 8
    if op.startswith('ds_write_b128'):
        return 28
    if op.startswith('ds_write_b64'):
        return 14
    if op.startswith('buffer_store_dwordx4'):
        return 24
    if op.startswith('buffer_') or op.startswith('global_'):
        return 8
    return 4


class Prog:
    def __init__(self):
        self.ins = []

    def e(self, text, tag=None, opt=False):
        if isinstance(text, (list, tuple)):
            for t in text:
                self.e(t, tag, opt)
            return
        if isinstance(text, Ins):
            self.ins.append(text)
            return
        for line in text.split('\n'):
            if line.strip():
                self.ins.append(Ins(line.strip(), tag, opt))

    @staticmethod
    def P(kind, arg=None):
        i = Ins('')
        i.pseudo = kind
        i.arg = arg
        return i

    def finalize(self, verbose=True):
        out = []
        lg = []
        vm = []
        smem = []
        nwait = nnop = 0

        def emit_wait(v=None, l=None):
            nonlocal nwait
            parts = []
            if v is not None and v < len(vm):
                v = min(v, 62)
                del vm[:len(vm) - v]
                parts.append(f'vmcnt({v})')
            if l is not None and (l < len(lg) or (l == 0 and smem)):
                l = min(l, 14)
                del lg[:len(lg) - l]
                if l == 0:
                    smem.clear()
                parts.append(f'lgkmcnt({l})')
            if parts:
                out.append(Ins('s_waitcnt ' + ' '.join(parts)))
                nwait += 1

        def need(regs, wr=(), kind=None):
            rv = set(regs) | (set() if kind == 'vmem' else set(wr))
            rl = set(regs) | (set() if kind == 'ds_read' else set(wr))
            regs = set(regs) | set(wr)
            v = l = None
            for i, (w, _) in enumerate(vm):
                if rv & w:
                    v = len(vm) - 1 - i
            for i, (w, _) in enumerate(lg):
                if rl & w:
                    l = len(lg) - 1 - i
            if any(regs & w for w in smem):
                l = 0
            if l is not None and smem:
                l = 0
            emit_wait(v, l)

        for ins in self.ins:
            if ins.pseudo == 'need':
                need(regs_of(ins.arg))
                continue
            if ins.pseudo == 'waittag':
                tags, alllds = ins.arg
                v = None
                for i, (_, t) in enumerate(vm):
                    if t in tags:
                        v = len(vm) - 1 - i
                l = None
                if alllds is True:
                    l = 0
                elif alllds:
                    for i, (_, t) in enumerate(lg):
                        if t in alllds:
                            l = len(lg) - 1 - i
                emit_wait(v, l)
                continue
            if ins.pseudo == 'reset':
                vm.clear(); lg.clear(); smem.clear()
                continue
            if ins.op == 's_waitcnt':
                m = re.search(r'vmcnt\((\d+)\)', ins.text)
                if m and int(m.group(1)) < len(vm):
                    del vm[:len(vm) - int(m.group(1))]
                m = re.search(r'lgkmcnt\((\d+)\)', ins.text)
                if m:
                    if int(m.group(1)) < len(lg):
                        del lg[:len(lg) - int(m.group(1))]
                    if int(m.group(1)) == 0:
                        smem.clear()
                out.append(ins)
                continue
            if ins.kind != 'label':
                need(ins.rd, ins.wr, ins.kind)
                if ins.kind == 'vmem' and len(vm) >= 61:
                    emit_wait(36, None)
                n = self.hazard(out, ins)
                if n > 0:
                    nnop += 1
                    while n > 0:
                        k = min(n, 16)
                        out.append(Ins(f's_nop {k - 1}'))
                        n -= k
            out.append(ins)
            if ins.kind in ('ds_read', 'ds_write'):
                if not ins.opt:
                    lg.append((set(ins.wr), ins.tag))
                else:
                    assert not ins.wr
            elif ins.kind == 'vmem':
                if not ins.opt:
                    vm.append((set(ins.wr), ins.tag))
                    assert len(vm) <= 63, ('too many vmem outstanding', ins.text)
            elif ins.kind == 'smem':
                smem.append(set(ins.wr))
        if verbose:
            print(f'finalize: {len(out)} instrs, {nwait} waits inserted, {nnop} nop sites')
        self.out = out
        return '\n'.join(('' if i.kind == 'label' else '    ') + i.text for i in out)

    @staticmethod
    def hazard(out, ins):
        missing = 0
        dist = 0
        rd = set(ins.rd)
        wr = set(ins.wr)
        isv = ins.is_valu()
        mem = ins.kind in ('vmem', 'ds_read', 'ds_write')
        dpp = 'quad_perm' in ins.text or 'row_' in ins.text
        for p in reversed(out):
            if dist >= 21:
                break
            req = 0
            pw = set(p.wr)
            if p.kind == 'mfma':
                if ins.kind == 'mfma':
                    if pw & set(ins.ab):
                        req = {4: 8, 8: 12, 16: 20}[p.passes]
                    elif pw & set(ins.srcc):
                        if not (p.wr == ins.srcc and p.op == ins.op):
                            req = {4: 6, 8: 10, 16: 18}[p.passes]
                    elif pw & wr and p.passes > ins.passes:
                        req = {4: 6, 8: 10, 16: 18}[p.passes]
                elif isv or mem:
                    if pw & (rd | wr):
                        req = {4: 8, 8: 12, 16: 20}[p.passes]
                    elif isv and set(p.srcc) & wr:
                        req = {4: 3, 8: 7, 16: 15}[p.passes]
            elif p.is_valu():
                hit = pw & rd
                vh = {r for r in hit if r[0] in 'va' and len(r[0]) == 1}
                sh = {r for r in hit if r[0] in ('s', 'vcc')}
                if ins.kind == 'mfma' and vh:
                    req = 3 if p.kind == 'dot' else 2
                if p.kind == 'dot' and (pw & (rd | wr)) and (isv or mem):
                    same = p.op == ins.op
                    if not same or (pw & set(regs_of(','.join(ins.text.split(',')[1:3])))):
                        req = max(req, 3)
                if p.kind == 'trans' and vh and isv and ins.kind != 'trans':
                    req = max(req, 1)
                if p.kind == 'trans' and vh and ins.kind == 'trans':
                    req = max(req, 1)
                if vh and (dpp or ins.op.startswith('v_permlane')):
                    req = max(req, 2)
                if vh and ins.op.startswith(('v_readlane', 'v_readfirstlane')):
                    req = max(req, 1)
                if sh:
                    if ins.kind == 'vmem':
                        req = max(req, 5)
                    elif ins.op.startswith(('v_readlane', 'v_writelane')):
                        req = max(req, 4)
                    elif isv:
                        req = max(req, 2)
                    else:
                        req = max(req, 2)
                if ('vcc', 0) in pw and ins.op.startswith('s_cbranch_vcc'):
                    req = max(req, 5)
            elif p.kind == 'salu':
                if ('m0', 0) in pw and ('m0', 0) in rd and ins.kind == 'vmem':
                    req = 1
                if ('exec', 0) in pw and dpp:
                    req = max(req, 2)
            elif p.kind == 'vmem':
                if p.wide_store and set(p.wide_store) & wr:
                    req = 2
            missing = max(missing, req - dist)
            dist += p.states()
        return missing


def interleave(mfmas, aux, fill, gap, start_fill=0, end_fill=None):
    n = len(mfmas)
    if end_fill is None:
        end_fill = n

    def c(x):
        if isinstance(x, Ins):
            return 4 if x.pseudo else cost(x.text)
        if isinstance(x, tuple):
            return cost(x[0])
        return cost(x)
    auxc = [sum(c(x) for x in a) for a in aux]
    for i in range(1, n):
        auxc[i - 1] += sum(c(x) for x in mfmas[i][:-1])
    tot_fill = sum(c(x) for x in fill)
    span = range(start_fill, end_fill)
    lo, hi = 0.0, 4000.0
    for _ in range(50):
        L = (lo + hi) / 2
        if sum(max(0.0, L - auxc[i]) for i in span) >= tot_fill:
            hi = L
        else:
            lo = L
    L = hi
    out = []
    gi = 0
    credit = 0.0
    for i in range(n):
        out += mfmas[i]
        out += aux[i]
        if start_fill <= i < end_fill:
            credit += max(0.0, L - auxc[i])
            while gi < len(fill) and credit >= c(fill[gi]) / 2:
                credit -= c(fill[gi])
                out.append(fill[gi])
                gi += 1
        if i == end_fill - 1:
            out += fill[gi:]
            gi = len(fill)
    return out
```

```python
import sys, struct, math
from asmlib import Prog, Ins, cost

NAME = 'parallel_sum__grouped_kv_mqa__geglu_ffn__prompt'
OPT = dict(stamp=0, touch=1, force_fb=0, shift=80.0)
for a in sys.argv[2:]:
    k, v = a.split('=')
    OPT[k] = float(v) if '.' in v else int(v)


def f2u(x):
    return '0x%08x' % struct.unpack('<I', struct.pack('<f', x))[0]


WS_KV = 0
WS_FLAG = 0x30000
WS_STAMP = 0x38000
WS_WOT = 0x40000
WS_O = 0x100000
WS_P = 0x400000
WS_STAMP2 = 0x3000000
WS_SIZE = 0x10000000
OOB = 0x40000000
REC = 4992

L_SS = 49152
L_QIMG = 98304
L_STASH = 153600
L_STATS = 162816
L_DSLOT = 36864
L_KV0 = 110592
L_OOR = 0x28000

SX, SW, SD, SWS, SA, SB = 28, 32, 36, 40, 44, 48
sM, sS, sW, sI1, sT0, sT1, sT2, sT3, sMB, sCNT = 52, 53, 54, 55, 56, 57, 58, 59, 60, 61
sP0, sP1 = 62, 63
TAB = 64
sQM = 4
sMK4, sMK5 = 100, 20


def srd(r):
    return f's[{r}:{r + 3}]'


vT0, vT1, vT2, vT3 = 0, 1, 2, 3
vDMA, vRB0, vRB1, vTCH = 4, 5, 6, 7
K0, K1, KR = 8, 12, 16
vDUM, vDMA2, vL, vSTAMP = 20, 21, 22, 23
WF = 24
XV = 48
H = 80
ACC0, ACC1 = 128, 192
XL = 80
PRE = 224


def v(r, n=1):
    return f'v{r}' if n == 1 else f'v[{r}:{r + n - 1}]'


def a(r, n=1):
    return f'a{r}' if n == 1 else f'a[{r}:{r + n - 1}]'


def xfrag(kap, u):
    i = 4 * kap + u
    return a(4 * i, 4) if i < 64 else v(XV + 4 * (i - 64), 4)


p = Prog()
P = Prog.P
E = p.e
_stamp = [0]
STAMPS = []


def T(text, tag=None, opt=False):
    return Ins(text, tag, opt)


def stamp(name):
    if not OPT['stamp']:
        return []
    i = _stamp[0]
    _stamp[0] += 1
    STAMPS.append(name)
    return ['s_memtime s[2:3]', 's_waitcnt lgkmcnt(0)', f'v_writelane_b32 v{vSTAMP}, s2, {i}',
            's_memrealtime s[2:3]', 's_waitcnt lgkmcnt(0)', f'v_writelane_b32 v{vSTAMP}, s2, {32 + i}']


def mk_srd(r, ptr, size):
    return [f's_mov_b32 s{r}, s{ptr}', f's_mov_b32 s{r + 1}, s{ptr + 1}', f's_mov_b32 s{r + 2}, {size}',
            f's_mov_b32 s{r + 3}, 0x20000']


def barrier(vtags=(), lds=True):
    return [P('waittag', (set(vtags), lds)), 's_barrier']


E(f'''
s_cmp_ge_u32 s2, 256
s_cbranch_scc1 L_end
s_load_dwordx16 s[4:19], s[0:1], 0
s_load_dwordx8 s[20:27], s[0:1], 64
v_lshrrev_b32 v1, 6, v0
v_and_b32 v{vL}, 63, v0
s_getpc_b64 s[{sT0}:{sT1}]
L_pc:
v_readfirstlane_b32 s{sW}, v1
s_lshr_b32 s{sT2}, s2, 3
''')
E(f'''
v_lshrrev_b32 v2, 3, v0
s_lshl_b32 s{sT3}, s{sT2}, 5
v_add_u32 v2, s{sT3}, v2
v_min_u32 v2, (L_end-L_pc)/128, v2
v_lshlrev_b32 v2, 7, v2
global_load_dword v{vDUM}, v2, s[{sT0}:{sT1}]
s_and_b32 s{sM}, s2, 1
s_lshl_b32 s{sM}, s{sM}, 3
s_and_b32 s{sT3}, s{sT2}, 7
s_add_u32 s{sM}, s{sM}, s{sT3}
s_bfe_u32 s{sS}, s2, 0x20001
s_lshl_b32 s{sS}, s{sS}, 2
s_lshr_b32 s{sT2}, s{sT2}, 3
s_add_u32 s{sS}, s{sS}, s{sT2}
s_lshl_b32 s{sCNT}, s2, 2
s_add_u32 s{sCNT}, s{sCNT}, s{sW}
s_bfe_u32 s{sI1}, s{sS}, 0x10001
s_lshl_b32 s{sMB}, s{sM}, 2
s_add_u32 s{sMB}, s{sMB}, s{sW}
v_lshrrev_b32 v1, 3, v{vL}
v_and_b32 v3, 7, v{vL}
v_mul_u32_u24 v0, 1152, v1
v_lshl_add_u32 v0, v3, 4, v0
''')
if OPT['stamp']:
    E(f'v_mov_b32 v{vSTAMP}, 0')
E(mk_srd(SX, 4, 2359296))
E(stamp('start'))
E(f's_and_b32 s{sT2}, s{sS}, 3')
for g in range(4):
    E(f'''
s_xor_b32 s{sT0}, s{sT2}, {g}
s_lshl_b32 s{sT1}, s{sMB}, 2
s_add_u32 s{sT0}, s{sT0}, s{sT1}
s_mul_i32 s{sT0}, s{sT0}, 9216
''')
    for c in range(9):
        E(f'buffer_load_dwordx4 {v(XL + 36 * g + 4 * c, 4)}, v0, {srd(SX)}, s{sT0} offen offset:{128 * c}')
E(f'''
s_cmp_ge_u32 s{sW}, 2
s_cselect_b32 s{SW}, s18, s16
s_cselect_b32 s{SW + 1}, s19, s17
s_mov_b32 s{SW + 2}, 5308416
s_mov_b32 s{SW + 3}, 0x20000
''')
E(mk_srd(SD, 20, 5308416))
E(mk_srd(SWS, 26, WS_SIZE))
E(mk_srd(SA, 6, 663552))
E(f'''
s_lshr_b32 s{sT0}, 0x2c, s{sS}
s_and_b32 s{sT0}, s{sT0}, 1
s_cmp_eq_u32 s{sT0}, 1
s_cselect_b32 s{SB}, s10, s8
s_cselect_b32 s{SB + 1}, s11, s9
s_mov_b32 s{SB + 2}, 20736
s_mov_b32 s{SB + 3}, 0x20000
s_mov_b32 s{sP0}, s12
s_mov_b32 s{sP1}, s13
''')
for st in range(9):
    for j in range(4):
        E(f's_mov_b32 s{TAB + 4 * st + j}, {(64 * st + 16 * j) * 9216 - 1024 * j}')
E(f'''
s_and_b32 s{sT0}, s{sW}, 1
s_mul_i32 s{sT1}, s{sS}, 576
s_and_b32 s{sT2}, s{sS}, 1
s_lshl_b32 s{sT3}, s{sT2}, 6
s_add_u32 s{sT3}, s{sT3}, s{sT1}
v_bfe_u32 v2, v{vL}, 4, 1
v_lshl_or_b32 v2, s{sT0}, 1, v2
v_lshlrev_b32 v2, 1, v2
v_xor_b32 v2, v2, v3
v_lshlrev_b32 v2, 4, v2
v_lshl_add_u32 v{vDMA}, s{sT0}, 3, v1
v_mul_u32_u24 v{vDMA}, 9216, v{vDMA}
v_add3_u32 v{vDMA}, v{vDMA}, v2, s{sT3}
''')
E(f'''
s_and_b32 s{sT1}, s{sM}, 7
s_lshl_b32 s{sT1}, s{sT1}, 1
s_add_u32 s{sT1}, s{sT1}, s{sT0}
s_mul_i32 s{sT1}, s{sT1}, 36
v_min_u32 v{vTCH}, 35, v{vL}
v_add_u32 v{vTCH}, s{sT1}, v{vTCH}
v_mul_u32_u24 v{vTCH}, 9216, v{vTCH}
v_add_u32 v{vTCH}, s{sT3}, v{vTCH}
''')
sWL = 19
E(f's_lshl_b32 s{sWL}, s{sW}, 12')


def dma_full(n, rnd_stage0, tag):
    out = []
    base = ((n + 2) % 3) * L_SS
    for q in range(3):
        st = rnd_stage0 + q
        out.append([f's_add_u32 m0, s{sWL}, {base + q * 16384}'])
        for j in range(4):
            out.append([T(f'buffer_load_dwordx4 v{vDMA}, {srd(SW)}, s{TAB + 4 * st + j} offen offset:{1024 * j} lds', tag)])
    return out


def flat(L):
    return [x for y in L for x in y]


E(flat(dma_full(0, 0, 'n0')))
if OPT['touch']:
    E(f'buffer_load_dword v{vDUM}, v{vTCH}, {srd(SW)}, 0 offen')

vQV = PRE
E(f'''
s_mul_i32 s{sT3}, s{sS}, 72
s_and_b32 s{sT3}, s{sT3}, 0xfffffff0
''')
for i in range(12):
    E(f'''
s_add_u32 s{sT0}, s{sW}, {4 * i}
s_min_u32 s{sT0}, s{sT0}, 44
s_mul_i32 s{sT1}, s{sT0}, 205
s_lshr_b32 s{sT1}, s{sT1}, 10
s_add_u32 s{sT1}, s{sT1}, s{sT0}
s_lshl_b32 s{sT1}, s{sT1}, 10
s_add_u32 s{sQM + i}, s{sT1}, {L_QIMG}
v_lshl_add_u32 v0, s{sT0}, 6, v{vL}
v_mul_u32_u24 v2, 13108, v0
v_lshrrev_b32 v2, 16, v2
v_mul_u32_u24 v{WF}, 5, v2
v_sub_u32 v0, v0, v{WF}
v_and_b32 v{WF}, 0xfffffff8, v2
v_bfe_u32 v{WF + 1}, v2, 1, 2
v_and_b32 v2, 1, v2
v_lshl_add_u32 v2, v2, 2, v{WF + 1}
v_add_u32 v2, v2, v{WF}
v_mul_u32_u24 v2, 1152, v2
v_lshl_add_u32 v2, v0, 4, v2
v_add_u32 v{vQV + i}, s{sT3}, v2
''')
E(f'''
s_and_b32 s{sT3}, s{sS}, 1
s_lshl_b32 s{sT3}, s{sT3}, 4
s_cmp_ge_u32 s{sS}, 4
s_cselect_b32 s{sT3}, 20, s{sT3}
''')
for i in range(3):
    E(f'''
s_add_u32 s{sT0}, s{sW}, {4 * i}
s_min_u32 s{sT0}, s{sT0}, 8
s_mul_i32 s{sT1}, s{sT0}, 6144
s_add_u32 s{sQM + 12 + i}, s{sT1}, {L_QIMG + 5120}
v_lshl_add_u32 v0, s{sT0}, 6, v{vL}
v_mul_u32_u24 v0, 36, v0
v_add_u32 v{vQV + 12 + i}, s{sT3}, v0
''')
vXW0, vXW1, vXR = PRE + 15, PRE + 16, PRE + 17
E(f'''
s_mul_i32 s{sT0}, s{sW}, 18432
s_and_b32 s{sT1}, s{sS}, 1
v_xor_b32 v0, v1, v3
v_lshl_or_b32 v0, s{sT1}, 3, v0
v_lshlrev_b32 v0, 4, v0
v_lshl_add_u32 v0, v3, 8, v0
v_add_u32 v{vXW0}, s{sT0}, v0
v_xor_b32 v{vXW1}, 128, v{vXW0}
v_lshrrev_b32 v2, 4, v{vL}
v_xor_b32 v0, v2, v{vL}
v_lshlrev_b32 v0, 4, v0
v_add_u32 v{vXR}, s{sT0}, v0
v_xor_b32 v{vXR + 1}, 64, v{vXR}
s_xor_b32 s{sT1}, s{sW}, 1
s_mul_i32 s{sT1}, s{sT1}, 18432
v_add_u32 v{vXR + 2}, s{sT1}, v0
v_xor_b32 v{vXR + 3}, 64, v{vXR + 2}
''')
vSW0, vSW1 = PRE + 21, PRE + 22
E(f'''
s_and_b32 s{sT1}, s{sS}, 1
s_lshl_b32 s{sT0}, s{sW}, 7
s_add_u32 s{sT0}, s{sT0}, {L_STATS}
v_lshl_or_b32 v0, s{sT1}, 3, v1
v_lshl_add_u32 v{vSW0}, v0, 2, s{sT0}
v_xor_b32 v{vSW1}, 32, v{vSW0}
''')
E(f'''
s_and_b32 s{sT0}, s{sW}, 1
v_bfe_u32 v0, v{vL}, 4, 1
v_bfe_u32 v2, v{vL}, 3, 2
v_lshlrev_b32 v{WF}, 1, s{sT0}
v_xor_b32 v2, v2, v{WF}
v_lshlrev_b32 v2, 5, v2
v_lshl_add_u32 v2, v0, 12, v2
v_lshrrev_b32 v0, 5, v{vL}
v_lshl_add_u32 v2, v0, 10, v2
v_bfe_u32 v0, v{vL}, 2, 2
v_lshl_add_u32 v2, v0, 7, v2
v_and_b32 v0, 3, v{vL}
v_lshl_add_u32 v2, v0, 3, v2
v_add_u32 v{vRB0}, {2 * L_SS}, v2
v_xor_b32 v{vRB1}, 32, v{vRB0}
''')
vQB, vQ3 = PRE + 23, PRE + 24
E(f'''
s_and_b32 s{sT0}, s{sS}, 1
s_lshl_b32 s{sT0}, s{sT0}, 3
s_add_u32 s{sT0}, s{sT0}, {L_QIMG}
v_lshrrev_b32 v0, 2, v{vL}
v_mul_u32_u24 v0, 160, v0
v_and_b32 v2, 3, v{vL}
v_add_u32 v0, s{sT0}, v0
v_lshl_add_u32 v{vQB}, v2, 3, v0
v_lshrrev_b32 v{WF}, 4, v{vL}
v_bfe_u32 v{WF + 1}, v{vL}, 2, 2
v_lshl_add_u32 v{WF}, v{WF}, 3, v{WF + 1}
v_and_b32 v{WF + 1}, 1, v{vL}
v_lshlrev_b32 v{WF + 1}, 3, v{WF + 1}
v_lshl_add_u32 v{WF}, v{WF}, 4, v{WF + 1}
v_cmp_lt_u32 vcc, 1, v2
''')
for par in range(2):
    for rd in range(2):
        E(f'''
v_add_u32 v{WF + 1}, {32 + par * 2560 + rd * 80}, v0
v_add_u32 v{WF + 2}, {L_QIMG + 5120 + par * 512 + rd * 64}, v{WF}
v_cndmask_b32 v{vQ3 + 2 * par + rd}, v{WF + 1}, v{WF + 2}, vcc
''')

sONE, sLO, sHI = sT0, sT1, sT2
E(f'''
s_mov_b32 s{sONE}, 0x3f803f80
s_mov_b32 s{sLO}, 0x00003f80
s_mov_b32 s{sHI}, 0x3f800000
''')


def red8(r):
    return [f'v_add_f32_dpp v{r}, v{r}, v{r} quad_perm:[1,0,3,2] row_mask:0xf bank_mask:0xf',
            f'v_add_f32_dpp v{r}, v{r}, v{r} quad_perm:[2,3,0,1] row_mask:0xf bank_mask:0xf',
            f'v_add_f32_dpp v{r}, v{r}, v{r} row_half_mirror row_mask:0xf bank_mask:0xf']


def ln_group(g, extra):
    X = XL + 36 * g
    t = WF
    pre = ['v_mov_b32 v0, 0', 'v_mov_b32 v3, 0']
    for i in range(36):
        pre.append(f'v_dot2c_f32_bf16 v0, s{sONE}, v{X + i}')
    pre += red8(0)
    pre += [f'v_mul_f32 v0, {f2u(1 / 576)}, v0', 'v_cvt_pk_bf16_f32 v1, v0, v0', 'v_and_b32 v1, 0xffff0000, v1',
            'v_sub_f32 v2, v0, v1', 'v_xor_b32 v1, 0x80000000, v1']
    k = 0
    for i, x in enumerate(pre):
        E(x)
        while k < len(extra) and k * len(pre) < (i + 1) * len(extra):
            E(extra[k])
            k += 1
    wr = vXW1 if g & 1 else vXW0
    for c in range(9):
        tt = t + 8 * (c & 1)
        for d in range(4):
            E(f'v_dot2_f32_bf16 v{tt + 2 * d}, v{X + 4 * c + d}, s{sLO}, v1')
            E(f'v_dot2_f32_bf16 v{tt + 2 * d + 1}, v{X + 4 * c + d}, s{sHI}, v1')
        if c > 0:
            for d in range(4):
                E(f'v_dot2c_f32_bf16 v3, v{X + 4 * c - 4 + d}, v{X + 4 * c - 4 + d}')
        for d in range(4):
            E(f'v_cvt_pk_bf16_f32 v{X + 4 * c + d}, v{tt + 2 * d}, v{tt + 2 * d + 1}')
        if c == 0 and g == 2:
            E(barrier())
        E(f'ds_write_b128 v{wr}, {v(X + 4 * c, 4)} offset:{2048 * c}')
    for d in range(4):
        E(f'v_dot2c_f32_bf16 v3, v{X + 32 + d}, v{X + 32 + d}')
    E(red8(3))
    E(f'''
v_mul_f32 v2, v2, v2
v_fma_f32 v3, v3, s{sT3}, -v2
v_max_f32 v3, 0, v3
v_cvt_pk_bf16_f32 v3, v3, v3
v_and_b32 v3, 0xffff0000, v3
v_add_f32 v3, {f2u(1e-5)}, v3
v_cvt_pk_bf16_f32 v3, v3, v3
v_and_b32 v3, 0xffff0000, v3
v_sqrt_f32 v3, v3
v_cvt_pk_bf16_f32 v3, v3, v3
v_and_b32 v3, 0xffff0000, v3
ds_write_b32 v{vSW1 if g & 1 else vSW0}, v3 offset:{64 * (g >> 1)}
''')


def readback(u0):
    out = []
    for kap in range(18):
        for who in range(2):
            out.append(T(f'ds_read_b128 {xfrag(kap, u0 + 2 * who)}, v{vXR + 2 * who + (kap & 1)} offset:{1024 * kap}', 'xrb'))
    return out


E(f's_mov_b32 s{sT3}, {f2u(1 / 576)}')
ln_group(0, [])
ln_group(1, [])
E(barrier())
ln_group(2, readback(0))
ln_group(3, [])
E(stamp('ln_done'))
E(barrier(['n0']))

groups = []


def wf(k, i):
    return WF + 8 * (k % 3) + 4 * i


def trr(k, i, rd, base, off):
    r = wf(k, i) + 2 * rd
    assert 0 <= off < 65536, off
    return f'ds_read_b64_tr_b16 {v(r, 2)}, v{base} offset:{off}'


def mf(acc, A, B, first):
    return f'v_mfma_f32_16x16x32_bf16 {v(acc, 4)}, {A}, {B}, {0 if first else v(acc, 4)}'


mark = {}
cur_slot = [2]


def add_full_round(rho, n0):
    acc = ACC0 if rho % 2 == 0 else ACC1
    mark[f'R{rho}'] = len(groups)
    for st in range(9):
        n = n0 + st // 3
        for tile in range(4):
            k = len(groups)
            c, mat = tile >> 1, tile & 1
            rd = []
            if st % 3 == 0 and mat == 0:
                sl = (n + 2) % 3
                if sl != cur_slot[0]:
                    rd.append(f'v_add_u32 v{vRB0 + c}, {((sl - cur_slot[0]) * L_SS) & 0xffffffff}, v{vRB0 + c}')
                if c == 1:
                    cur_slot[0] = sl
            for i in range(2):
                for r in range(2):
                    rd.append(trr(k, i, r, vRB0 + c, (st % 3) * 16384 + mat * 8192 + i * 2048 + r * 512))
            m = [mf(acc + 16 * tile + 4 * u, v(wf(k, i), 4), xfrag(2 * st + i, u), st == 0 and i == 0)
                 for u in range(4) for i in range(2)]
            groups.append(dict(m=m, r=rd, ep=f'n{n}'))


QACC = H + 16


def add_q():
    mark['Q'] = len(groups)
    for blk in range(9):
        for tile in range(3):
            k = len(groups)
            rd = []
            for i in range(2):
                for r in range(2):
                    if tile < 2:
                        rd.append(trr(k, i, r, vQB, blk * 6144 + i * 2560 + r * 80 + tile * 40))
                    else:
                        rd.append(trr(k, i, r, vQ3 + 2 * i + r, blk * 6144))
            m = [mf(QACC + 8 * tile + 4 * u, v(wf(k, i), 4), xfrag(2 * blk + i, u), blk == 0 and i == 0)
                 for u in range(2) for i in range(2)]
            groups.append(dict(m=m, r=rd, ep='n3'))


def add_half():
    mark['RH'] = len(groups)
    for st in range(9):
        for mat in range(2):
            k = len(groups)
            rd = []
            if st == 0 and mat == 0:
                rd += [f'v_lshrrev_b32 v{vRB0}, 4, v{vL}', f'v_bfe_u32 v{vT2}, v{vL}, 2, 2',
                       f'v_lshl_add_u32 v{vT2}, v{vRB0}, 3, v{vT2}', f'v_xor_b32 v{vRB0}, s{sW}, v{vRB0}',
                       f'v_and_b32 v{vRB0}, 1, v{vRB0}', f'v_lshlrev_b32 v{vRB0}, 5, v{vRB0}',
                       f'v_lshl_add_u32 v{vRB0}, v{vT2}, 6, v{vRB0}', f'v_and_b32 v{vT2}, 3, v{vL}',
                       f'v_lshl_add_u32 v{vRB0}, v{vT2}, 3, v{vRB0}']
            if st == 6 and mat == 0:
                rd.append(f'v_add_u32 v{vRB0}, 49152, v{vRB0}')
            part = st // 3
            for i in range(2):
                for r in range(2):
                    rd.append(trr(k, i, r, vRB0, (part % 2) * 24576 + mat * 12288 + (2 * (st % 3) + i) * 2048 + r * 256))
            m = [mf(ACC0 + 16 * mat + 4 * u, v(wf(k, i), 4), xfrag(2 * st + i, u), st == 0 and i == 0)
                 for u in range(4) for i in range(2)]
            groups.append(dict(m=m, r=rd, ep=f'h{part}'))


def hown(e):
    return H + 4 * e if e < 12 else ACC0 + 32 + 4 * (e - 12)


HH = ACC0 + 48
DB = ACC0 + 56
DACC = ACC1
STG = XV


def dslot(r):
    return ((r + 2) % 4) * L_DSLOT


def add_down(r):
    mark[f'D{r}'] = len(groups)
    acc = DACC + 32 * (r % 2)
    delta = (dslot(r) - dslot(r - 1)) & 0xffffffff
    for who in range(2):
        for c in range(2):
            for pr in range(2):
                k = len(groups)
                rd = []
                if r > 0 and pr == 0:
                    rd.append(f'v_add_u32 v{DB + 2 * who + c}, {delta}, v{DB + 2 * who + c}')
                for i in range(2):
                    for q in range(2):
                        rd.append(trr(k, i, q, DB + 2 * who + c, q * 18432 + (2 * pr + i) * 2048))
                m = []
                for u in range(4):
                    for i in range(2):
                        e = 4 * (2 * pr + i) + u
                        B = v(hown(e), 4) if who == 0 else a(4 * e, 4)
                        m.append(mf(acc + 16 * c + 4 * u, v(wf(k, i), 4), B, who == 0 and pr == 0 and i == 0))
                groups.append(dict(m=m, r=rd, ep=f'd{r}'))
    k = len(groups)
    rd = []
    for c in range(2):
        if r > 0:
            rd.append(f'v_add_u32 v{DB + 4 + c}, {delta}, v{DB + 4 + c}')
        for q in range(2):
            rd.append(trr(k, c, q, DB + 4 + c, q * 18432))
    m = [mf(acc + 16 * c + 4 * u, v(wf(k, c), 4), a(64 + 4 * u, 4), False) for c in range(2) for u in range(4)]
    groups.append(dict(m=m, r=rd, ep=f'd{r}'))


add_full_round(0, 0)
add_q()
add_full_round(1, 4)
add_full_round(2, 7)
add_full_round(3, 10)
add_half()
for r in range(9):
    add_down(r)
mark['END'] = len(groups)
NG = len(groups)

gstart = [0]
for g in groups:
    gstart.append(gstart[-1] + len(g['m']))
NM = gstart[-1]
aux = [[] for _ in range(NM)]
pre = [[] for _ in range(NM)]
ep_start = {}
ep_start['n0'] = 0


def ep_of(k):
    return groups[k]['ep'] if k < NG else 'att'


for k in range(NG):
    n = len(groups[k]['m'])
    b = gstart[k]
    pre[b].append(P('need', v(wf(k, 0), 8)))
    last_before_bar = k + 2 < NG and ep_of(k + 3) != ep_of(k + 2)
    if k + 2 < NG:
        rd = groups[k + 2]['r']
        span = n // 2 if (last_before_bar and n == 8) else n
        for i, x in enumerate(rd):
            aux[b + (i * span) // len(rd)].append(x)
    if last_before_bar:
        e = ep_of(k + 3)
        tags = {'att': ['kvD', 'kvA']}.get(e, [e])
        aux[b + n - 1].append(('BAR', tags))
        ep_start[e] = b + n


def spread(items, lo, hi):
    n = len(items)
    for i, it in enumerate(items):
        j = lo + (i * (hi - lo)) // n
        if j + 1 < hi and (i + 1 == n or lo + ((i + 1) * (hi - lo)) // n > j + 1) and len(aux[j + 1]) < len(aux[j]):
            j += 1
        if aux[j] and isinstance(aux[j][-1], tuple) and aux[j][-1][0] == 'BAR':
            aux[j][-1:-1] = it
        else:
            aux[j] += it


order = ['n%d' % i for i in range(13)] + ['h0', 'h1', 'h2'] + ['d%d' % i for i in range(9)] + ['att']


def ep_span(e, frac=0.7):
    lo = ep_start[e]
    hi = ep_start[order[order.index(e) + 1]] if e != 'att' else NM
    return lo, lo + max(1, int((hi - lo) * frac))


def touch(off):
    return [[f'buffer_load_dword v{vDUM}, v{vTCH}, {srd(SW)}, 0 offen offset:{off}']] if OPT['touch'] else []


adv = [[f'v_add_u32 v{vDMA}, 128, v{vDMA}']]

rb = readback(1)
RBN = 40
first_rb = rb[:4]
spread([[x] for x in rb[4:]], 0, RBN - 6)
aux[RBN - 1].append(('BAR', []))
spread(dma_full(1, 3, 'n1') + dma_full(2, 6, 'n2'), RBN, ep_start['n1'])
qd = []
for i in range(12):
    qd.append([f's_mov_b32 m0, s{sQM + i}'])
    qd.append([T(f'buffer_load_dwordx4 v{vQV + i}, {srd(SA)}, 0 offen lds', 'n3')])
for i in range(3):
    qd.append([f's_mov_b32 m0, s{sQM + 12 + i}'])
    qd.append([T(f'buffer_load_dwordx4 v{vQV + 12 + i}, {srd(SB)}, 0 offen lds', 'n3')])
spread(touch(128) + qd, *ep_span('n1', 0.6))
for n in range(4, 13):
    st0 = 3 * ((n - 4) % 3)
    items = (adv if st0 == 0 else []) + dma_full(n, st0, f'n{n}')
    if n == 6:
        items = touch(256) + items
    if n == 9:
        items = touch(384) + items
    spread(items, *ep_span(f'n{n - 2}'))


def dma_half(part):
    out = []
    for pr in range(3):
        out.append([f's_add_u32 m0, s{sT3}, {part * 24576 + pr * 4096}'])
        for i in range(2):
            out.append([T(f'buffer_load_dwordx4 v{vDMA2}, {srd(SW)}, s{TAB + 4 * (3 * part + pr) + 2 * i} offen offset:{2048 * i} lds', f'h{part}')])
    return out


half_setup = [[x] for x in f'''s_and_b32 s{sT0}, s{sW}, 1
s_lshr_b32 s{sT1}, s{sW}, 1
s_mul_i32 s{sT3}, s{sT1}, 12288
s_lshl_b32 s{sT1}, s{sT0}, 10
s_add_u32 s{sT3}, s{sT3}, s{sT1}
s_and_b32 s{sT1}, s{sS}, 1
s_xor_b32 s{sT1}, s{sT1}, 1
s_lshl_b32 s{sT1}, s{sT1}, 9
s_mul_i32 s{sT2}, s{sS}, 576
s_add_u32 s{sT2}, s{sT2}, s{sT1}
v_lshrrev_b32 v{vDMA2}, 2, v{vL}
v_lshl_add_u32 v{vDMA2}, s{sT0}, 4, v{vDMA2}
v_mul_u32_u24 v{vDMA2}, 9216, v{vDMA2}
v_bfe_u32 v{vT2}, v{vL}, 4, 2
v_and_b32 v{vT2}, 2, v{vT2}
v_xor_b32 v{vT2}, v{vT2}, v{vL}
v_and_b32 v{vT2}, 3, v{vT2}
v_lshlrev_b32 v{vT2}, 4, v{vT2}
v_add3_u32 v{vDMA2}, v{vDMA2}, v{vT2}, s{sT2}'''.split('\n')]
lo, hi = ep_span('n10', 1.0)
spread(half_setup, lo + int((hi - lo) * 0.72), hi - 2)
spread(dma_half(0) + dma_half(1), *ep_span('n11'))
wd_setup = [[x] for x in f'''s_and_b32 s{sT0}, s{sM}, 7
s_lshl_b32 s{sT0}, s{sT0}, 2
s_add_u32 s{sT0}, s{sT0}, s{sW}
s_mul_i32 s{sT0}, s{sT0}, {81 * 128}
s_mul_i32 s{sT1}, s{sS}, 331776
s_add_u32 s{sT0}, s{sT0}, s{sT1}
v_lshlrev_b32 v{vTCH}, 7, v{vL}'''.split('\n')]
if OPT['touch']:
    wd_setup += [[f'buffer_load_dword v{vDUM}, v{vTCH}, {srd(SD)}, s{sT0} offen'],
                 [f'v_min_u32 v{vTCH}, {16 * 128}, v{vTCH}'], [f's_add_u32 s{sT0}, s{sT0}, 8192'],
                 [f'buffer_load_dword v{vDUM}, v{vTCH}, {srd(SD)}, s{sT0} offen']]
wd_setup2 = [[x] for x in f'''v_lshrrev_b32 v{vDMA}, 3, v{vL}
v_lshl_add_u32 v{vDMA}, s{sW}, 3, v{vDMA}
v_mul_u32_u24 v{vDMA}, 1152, v{vDMA}
v_lshrrev_b32 v{vT2}, 3, v{vL}
v_and_b32 v{vT2}, 6, v{vT2}
v_xor_b32 v{vT2}, v{vT2}, v{vL}
v_and_b32 v{vT2}, 7, v{vT2}
v_lshlrev_b32 v{vT2}, 4, v{vT2}
v_add3_u32 v{vDMA}, v{vDMA}, v{vT2}, s{sT1}
s_and_b32 s{sT0}, s{sS}, 1
s_mul_i32 s{sT2}, s{sT0}, 36864
s_xor_b32 s{sT0}, s{sT0}, 1
s_mul_i32 s{TAB + 8}, s{sT0}, {256 * 1152}
s_mul_i32 s{sWL}, s{sW}, 9216'''.split('\n')]
wd_setup2 += [[f's_add_u32 s{TAB + kap}, s{sT2}, {kap * 36864 - 1024 * (kap % 4)}'] for kap in range(8)]
spread(wd_setup + dma_half(2) + wd_setup2, *ep_span('n12', 0.95))


def dma_down(r):
    out = [] if r == 0 else list(adv)
    for kap in range(9):
        if kap % 4 == 0:
            out.append([f's_add_u32 m0, s{sWL}, {dslot(r) + kap * 1024}'])
        out.append([T(f'buffer_load_dwordx4 v{vDMA}, {srd(SD)}, s{TAB + kap} offen offset:{1024 * (kap % 4)} lds', f'd{r}')])
    return out


vHW, vHR, vH8W, vH8R = vRB1, vTCH, ACC0 + 62, ACC0 + 63
dn_setup = [[x] for x in f'''v_bfe_u32 v{vT2}, v{vL}, 2, 3
v_lshlrev_b32 v{DB}, 7, v{vT2}
v_lshrrev_b32 v{vT2}, 1, v{vT2}
s_and_b32 s{sT0}, s{sW}, 1
s_lshl_b32 s{sT1}, s{sT0}, 1
v_xor_b32 v{vT2}, s{sT1}, v{vT2}
v_lshl_add_u32 v{DB}, v{vT2}, 5, v{DB}
v_and_b32 v{vT2}, 3, v{vL}
v_lshl_add_u32 v{DB}, v{vT2}, 3, v{DB}
v_lshrrev_b32 v{vT2}, 5, v{vL}
v_mul_u32_u24 v{vT2}, 9216, v{vT2}
v_add_u32 v{DB}, v{DB}, v{vT2}
v_add_u32 v{DB + 4}, {dslot(0) + 8192}, v{DB}
v_xor_b32 v{DB + 5}, 32, v{DB + 4}
s_lshl_b32 s{sT1}, s{sT0}, 10
s_add_u32 s{sT1}, s{sT1}, {dslot(0)}
s_xor_b32 s{sT2}, s{sT1}, 1024
v_add_u32 v{DB + 2}, s{sT2}, v{DB}
v_add_u32 v{DB}, s{sT1}, v{DB}
v_xor_b32 v{DB + 1}, 32, v{DB}
v_xor_b32 v{DB + 3}, 32, v{DB + 2}
s_mul_i32 s{sT1}, s{sW}, 6144
v_lshl_add_u32 v{vHW}, v{vL}, 4, s{sT1}
s_xor_b32 s{sT1}, s{sW}, 1
s_mul_i32 s{sT1}, s{sT1}, 6144
v_lshl_add_u32 v{vHR}, v{vL}, 4, s{sT1}
v_lshl_add_u32 v{vH8W}, s{sT0}, 3, v{vHW}
v_lshl_add_u32 v{vH8R}, s{sT0}, 3, v{vHR}'''.split('\n')]
assert dslot(0) % 2048 == 0
spread(dma_down(0), ep_start['h0'], gstart[mark['RH']] + 1)
spread(dn_setup, gstart[mark['RH']] + 1, ep_start['h1'] - 1)


def hx_write(es):
    return [[f'ds_write_b128 v{vHW}, {v(hown(e), 4)} offset:{(e // 6) * 24576 + (e % 6) * 1024}'] for e in es]


def hx_read(es):
    return [[f'ds_read_b128 {a(4 * (e ^ 2), 4)}, v{vHR} offset:{(e // 6) * 24576 + (e % 6) * 1024}'] for e in es]


spread(dma_down(1) + hx_write(range(0, 6)), *ep_span('h1', 0.85))
spread(hx_read(range(0, 6)) + hx_write(range(6, 12)), *ep_span('h2', 0.85))
BY = gstart[mark['D0'] + 4] - 1
spread(hx_read(range(6, 12)), ep_start['d0'], ep_start['d0'] + 12)
aux[BY].append(('BAR', []))
k8_reads = [[f'ds_read_b128 {a(64 + 4 * u, 4)}, v{vHW if u < 2 else vHR} offset:{49152 + 4096 + (u & 1) * 1024}'] for u in range(4)]
spread(hx_read(range(12, 16)) + k8_reads, BY + 1, BY + 7)
spread(dma_down(2), BY + 7, ep_start['d1'] - 1)
spread(dma_down(3) + dma_down(4), *ep_span('d1', 0.9))
for r in range(5, 9):
    spread(dma_down(r), *ep_span(f'd{r - 3}'))


def dma_kv(lds_base, src_base, npieces, tag):
    out = [[f's_mul_i32 s{sT0}, s{sW}, {npieces * 1024}']]
    for j in range(npieces):
        if j % 4 == 0:
            out.append([f's_add_u32 m0, s{sT0}, {lds_base + j * 1024}'])
            out.append([f's_add_u32 s{sT1}, s{sT0}, {WS_KV + src_base + j * 1024}'])
        out.append([T(f'buffer_load_dwordx4 v{vDMA2}, {srd(SWS)}, s{sT1} offen offset:{1024 * (j % 4)} sc1 lds', tag)])
    return out


def poll(label, load, reg, want):
    return [f'v_cmp_ne_u32 vcc, {want}, v{reg}', 's_cmp_eq_u64 vcc, 0', f's_cbranch_scc0 {label}_slow', f'{label}_ok:']


side = []


def poll_side(label, load, reg, want):
    side.append(f'''{label}_slow:
    s_mov_b32 s{sCNT}, 0
{label}_loop:
    s_sleep 4
    {load}
    s_waitcnt vmcnt(0)
    v_cmp_ne_u32 vcc, {want}, v{reg}
    s_add_u32 s{sCNT}, s{sCNT}, 1
    s_nop 4
    s_cmp_eq_u64 vcc, 0
    s_cbranch_scc1 {label}_ok
    s_cmp_lt_u32 s{sCNT}, 0x4000
    s_cbranch_scc1 {label}_loop
    s_branch {label}_ok
''')


ldA = f'buffer_load_dword v{vT3}, off, {srd(SB)}, 0 sc1'
spread([[ldA], [f'v_lshlrev_b32 v{vDMA2}, 4, v{vL}']], ep_start['d4'], ep_start['d4'] + 4)
poll_side('L_pa', ldA, vT3, '0x100')
spread([poll('L_pa', ldA, vT3, '0x100')] + dma_kv(L_KV0, 0, 13, 'kvD'), *ep_span('d6', 0.8))
spread(dma_kv(0, 10 * REC, 9, 'kvA'), *ep_span('d7'))
spread(dma_kv(L_DSLOT, 10 * REC + L_DSLOT, 9, 'kvB'), *ep_span('d8'))
spread(dma_kv(2 * L_DSLOT, 10 * REC + 2 * L_DSLOT, 9, 'kvC'), ep_start['att'], NM)

fills = []
C0 = -2.0 * math.log2(math.e) * math.sqrt(2.0 / math.pi)
C1 = C0 * 0.044715
QS = 18 ** -0.5 * math.log2(math.e)


def gelu_pair(g, u_, uu, dst):
    t0, t1 = vT0, vT1
    return [f'v_mul_f32 v{t0}, v{g}, v{g}', f'v_mul_f32 v{t1}, v{g + 1}, v{g + 1}',
            f'v_fma_f32 v{t0}, v{t0}, v{K1 + uu}, v{K0 + uu}', f'v_fma_f32 v{t1}, v{t1}, v{K1 + uu}, v{K0 + uu}',
            f'v_mul_f32 v{t0}, v{t0}, v{g}', f'v_mul_f32 v{t1}, v{t1}, v{g + 1}',
            f'v_exp_f32 v{t0}, v{t0}', f'v_exp_f32 v{t1}, v{t1}',
            f'v_mul_f32 v{u_}, v{g}, v{u_}',
            f'v_fma_f32 v{t0}, v{t0}, v{KR + uu}, v{KR + uu}', f'v_fma_f32 v{t1}, v{t1}, v{KR + uu}, v{KR + uu}',
            f'v_rcp_f32 v{t0}, v{t0}', f'v_rcp_f32 v{t1}, v{t1}',
            f'v_mul_f32 v{u_ + 1}, v{g + 1}, v{u_ + 1}',
            f'v_mul_f32 v{t0}, v{t0}, v{u_}', f'v_mul_f32 v{t1}, v{t1}, v{u_ + 1}',
            f'v_cvt_pk_bf16_f32 v{dst}, v{t0}, v{t1}']


def gelu_full(rho):
    acc = ACC0 if rho % 2 == 0 else ACC1
    out = []
    for c in range(2):
        for u in range(4):
            for pr in range(2):
                out += gelu_pair(acc + 32 * c + 4 * u + 2 * pr, acc + 32 * c + 16 + 4 * u + 2 * pr, u, hown(4 * rho + u) + 2 * c + pr)
    return out


vKA, vVA, vSTA, vSTB, vLC = H + 40, H + 41, H + 45, H + 46, H + 47
G0 = ACC1
r0 = []
r0 += f'''s_lshl_b32 s{sT0}, s{sW}, 7
s_add_u32 s{sT0}, s{sT0}, {L_STATS}
v_and_b32 v{G0}, 15, v{vL}
v_lshl_add_u32 v{G0 + 1}, v{G0}, 2, s{sT0}
v_xor_b32 v{G0 + 2}, 128, v{G0 + 1}
ds_read_b32 v{KR}, v{G0 + 1}
ds_read_b32 v{KR + 1}, v{G0 + 1} offset:64
ds_read_b32 v{KR + 2}, v{G0 + 2}
ds_read_b32 v{KR + 3}, v{G0 + 2} offset:64'''.split('\n')
r0 += f'''s_mov_b32 s{SB}, s{sP0}
s_mov_b32 s{SB + 1}, s{sP1}
s_mov_b32 s{SB + 2}, 663552
s_mul_i32 s{sT0}, s{sCNT}, 1599
s_lshr_b32 s{sT0}, s{sT0}, 16
s_mul_i32 s{sT1}, s{sT0}, 41
s_sub_u32 s{sT1}, s{sCNT}, s{sT1}
s_lshr_b32 s{sT2}, s{sT0}, 2
s_mul_i32 s{sT2}, s{sT2}, 288
s_and_b32 s{sT0}, s{sT0}, 3
s_mul_i32 s{sT0}, s{sT0}, {144 * 1152}
s_add_u32 s{sT2}, s{sT2}, s{sT0}
s_and_b32 s{sT0}, s{sT1}, 3
s_mul_i32 s{sT0}, s{sT0}, {36 * 1152}
s_lshr_b32 s{sT3}, s{sT1}, 2
s_lshl_b32 s{sT3}, s{sT3}, 5
s_add_u32 s{sT0}, s{sT0}, s{sT3}
s_lshl_b32 s{sT3}, s{sT1}, 6
s_add_u32 s{sT3}, s{sT3}, {16 * 1152 - 36 * 64}
s_mov_b32 s4, {72 * 1152}
s_mov_b32 s5, {36 * 1152}
s_mov_b32 s6, {18 * 1152}
s_mov_b32 s8, {18 * 1152 + 32}'''.split('\n')
r0 += [[f's_cmp_lt_u32 s{sT1}, 36', f's_cselect_b32 s{sT0}, s{sT0}, s{sT3}',
        f's_cmov_b32 s4, {18 * 1152}', f's_cmov_b32 s5, {4 * 1152}', f's_cmov_b32 s6, {2 * 1152}',
        f's_cselect_b32 s7, {8 * 1152}, 32', f's_cmov_b32 s8, {10 * 1152}']]
r0 += f'''s_add_u32 s{sT2}, s{sT2}, s{sT0}
s_add_u32 s6, s6, s{sT2}
s_add_u32 s7, s7, s{sT2}
s_add_u32 s8, s8, s{sT2}
v_lshrrev_b32 v{G0 + 3}, 5, v{vL}
v_mul_lo_u32 v{G0 + 3}, v{G0 + 3}, s4
v_bfe_u32 v{G0 + 8}, v{vL}, 4, 1
v_mul_lo_u32 v{G0 + 8}, v{G0 + 8}, s5
v_lshl_add_u32 v{G0 + 3}, v{G0}, 1, v{G0 + 3}
v_add_u32 v{G0 + 3}, v{G0 + 3}, v{G0 + 8}'''.split('\n')
for q, so in enumerate((sT2, 6, 7, 8)):
    r0.append(f'buffer_load_ushort v{G0 + 4 + q}, v{G0 + 3}, {srd(SB)}, s{so} offen')
    r0.append(f'buffer_load_ushort v{G0 + 24 + q}, v{G0 + 3}, {srd(SB)}, s{so} offen offset:1152')
for u in range(4):
    r0 += [f'v_rcp_f32 v{K0 + u}, v{KR + u}', f'v_mul_f32 v{KR + u}, v{KR + u}, v{KR + u}',
           f'v_mul_f32 v{K1 + u}, v{K0 + u}, v{K0 + u}', f'v_mul_f32 v{K0 + u}, {f2u(C0)}, v{K0 + u}',
           f'v_mul_f32 v{K1 + u}, {f2u(0.044715)}, v{K1 + u}', f'v_mul_f32 v{K1 + u}, v{K1 + u}, v{K0 + u}']


def o_addr(va, vb, t):
    return [f's_lshl_b32 s{sT1}, s{sI1}, 4', f'v_xor_b32 v{t}, s{sT1}, v{vL}', f'v_lshlrev_b32 v{va}, 4, v{t}',
            f'v_lshlrev_b32 v{vb}, 3, v{t}', f'v_lshrrev_b32 v{t}, 5, v{vL}', f'v_lshl_add_u32 v{vb}, v{t}, 30, v{vb}',
            f's_lshl_b32 s{sT0}, s{sMB}, 4', f's_add_u32 s{sT0}, s{sT0}, s{sS}', f's_mul_i32 s{sT0}, s{sT0}, 2304',
            f's_add_u32 s{sT0}, s{sT0}, {WS_O}']


def flag_addr(va):
    return [f'v_min_u32 v{va}, 1, v{vL}', f'v_lshlrev_b32 v{va}, 30, v{va}', f's_lshl_b32 s{sT1}, s{sM}, 4',
            f's_add_u32 s{sT1}, s{sT1}, s{sS}', f's_lshl_b32 s{sT1}, s{sT1}, 2', f's_add_u32 s{sT1}, s{sT1}, s{sW}',
            f's_lshl_b32 s{sT1}, s{sT1}, 2', f's_add_u32 s{sT1}, s{sT1}, {WS_FLAG}']


r0 += o_addr(G0 + 9, G0 + 10, G0 + 11)
r0 += [f'v_mov_b32 v{G0 + 12 + i}, -1' for i in range(4)]
r0 += [f'buffer_store_dwordx4 {v(G0 + 12, 4)}, v{G0 + 9}, {srd(SWS)}, s{sT0} offen sc1',
       f'buffer_store_dwordx4 {v(G0 + 12, 4)}, v{G0 + 9}, {srd(SWS)}, s{sT0} offen offset:1024 sc1',
       f'buffer_store_dwordx2 {v(G0 + 12, 2)}, v{G0 + 10}, {srd(SWS)}, s{sT0} offen offset:2048 sc1']
r0 += flag_addr(G0 + 11) + [f'v_mov_b32 v{G0 + 16}, 0', f'buffer_store_dword v{G0 + 16}, v{G0 + 11}, {srd(SWS)}, s{sT1} offen sc1']
g_, c_, key = G0 + 17, G0 + 18, G0 + 19
t1_, t2_ = G0 + 20, G0 + 21
r0 += f'''s_lshr_b32 s9, s{sMB}, 1
s_mul_i32 s9, s9, {REC}
s_add_u32 s9, s9, {WS_KV}
v_lshrrev_b32 v{g_}, 4, v{vL}
v_and_b32 v{c_}, 1, v{g_}
v_lshl_or_b32 v{key}, s{sI1}, 4, v{G0}
s_and_b32 s{sT0}, s{sW}, 1
s_lshl_b32 s{sT1}, s{sT0}, 10
s_lshl_b32 s{sT2}, s{sS}, 9
s_add_u32 s{sT1}, s{sT1}, s{sT2}
s_lshl_b32 s{sT2}, s{sT0}, 3
s_add_u32 s{sT2}, s{sT2}, 2040'''.split('\n')
r0 += [[f's_cmp_eq_u32 s{sS}, 4', f's_cselect_b32 s{sT1}, s{sT2}, s{sT1}', f's_cselect_b32 s{sT3}, 3, 4',
        f's_cselect_b64 s[{sMK4}:{sMK4 + 1}], -1, 0'],
       [f's_cmp_lt_u32 s{sS}, 2', f's_cselect_b32 s{sT3}, 2, s{sT3}']]
r0 += f'''v_lshl_add_u32 v{vKA}, v{key}, 4, s{sT1}
v_lshl_add_u32 v{vKA}, v{c_}, 3, v{vKA}
v_mov_b32 v{t2_}, {OOB}'''.split('\n')
r0 += [[f'v_cmp_gt_u32 vcc, s{sT3}, v{g_}', 's_nop 1', f'v_cndmask_b32 v{vKA}, v{vKA}, v{t2_}, vcc']]
r0 += [[f's_cmp_eq_u32 s{sS}, 3', f's_cselect_b32 s{sT1}, 8, 0', f's_cselect_b32 s{sT2}, 0, 64'],
       [f's_cmp_eq_u32 s{sS}, 2', f's_cselect_b32 s{sT2}, 0, s{sT2}'],
       [f's_cmp_eq_u32 s{sS}, 5', f's_cselect_b32 s{sT1}, 10, s{sT1}', f's_cselect_b32 s{sT2}, 16, s{sT2}',
        f's_cselect_b32 s{sMK5 + 1}, 0xffff, 0', f's_mov_b32 s{sMK5}, 0']]
r0 += [f'v_lshl_or_b32 v{key}, s{sT0}, 5, v{key}', f'v_lshl_add_u32 v{c_}, v{c_}, 2, s{sT1}']
for j in range(4):
    d = G0 + 22
    r0 += [f'v_add_u32 v{d}, {j}, v{c_}']
    if j == 0:
        r0 += [f'v_cndmask_b32 v{d}, v{d}, 18, s[{sMK5}:{sMK5 + 1}]']
    r0 += [f'v_bfe_u32 v{t1_}, v{d}, 1, 3', f'v_lshlrev_b32 v{t1_}, 3, v{t1_}', f'v_xor_b32 v{t1_}, v{t1_}, v{key}',
           f'v_lshlrev_b32 v{t1_}, 1, v{t1_}', f'v_lshl_add_u32 v{t1_}, v{d}, 7, v{t1_}',
           f'v_add_u32 v{t1_}, 2560, v{t1_}',
           [f'v_cmp_gt_u32 vcc, s{sT2}, v{d}', 's_nop 1', f'v_cndmask_b32 v{t1_}, v{t1_}, v{t2_}, vcc'],
           [f'v_cmp_gt_u32 vcc, 2, v{g_}', 's_nop 1', f'v_cndmask_b32 v{vVA + j}, v{t1_}, v{t2_}, vcc']]
r0 += f'''s_mul_i32 s{sT0}, s{sW}, 2304
s_add_u32 s{sT0}, s{sT0}, {L_STASH}
v_mul_u32_u24 v{t1_}, 72, v{G0}
v_add_u32 v{t1_}, s{sT0}, v{t1_}
v_lshl_add_u32 v{vSTA}, v{g_}, 3, v{t1_}
v_add_u32 v{t1_}, 32, v{t1_}
v_mov_b32 v{t2_}, {L_OOR}
v_mov_b32 v{d}, {f2u(1.0 / C0)}
v_mov_b32 v{vLC}, {f2u(QS / C0)}'''.split('\n')
r0 += [[f'v_cmp_gt_u32 vcc, 2, v{g_}', 's_nop 1', f'v_cndmask_b32 v{vSTB}, v{t2_}, v{t1_}, vcc',
        f'v_cndmask_b32 v{vLC}, v{d}, v{vLC}, vcc']]
r0 += [P('need', v(G0 + 27))] + [f'v_lshl_or_b32 v{G0 + 4 + q}, v{G0 + 24 + q}, 16, v{G0 + 4 + q}' for q in range(4)]
r0 += [[f's_cmp_lt_u32 s{sCNT}, 656', f's_cselect_b32 s{sT0}, 0, {OOB}'],
       f'v_lshl_add_u32 v{G0 + 3}, v{vL}, 4, s{sT0}', f's_lshl_b32 s{sT0}, s{sCNT}, 10', f's_add_u32 s{sT0}, s{sT0}, {WS_WOT}',
       f'buffer_store_dwordx4 {v(G0 + 4, 4)}, v{G0 + 3}, {srd(SWS)}, s{sT0} offen sc1',
       f's_mov_b32 s{SB}, s24', f's_mov_b32 s{SB + 1}, s25', f's_mov_b32 s{SB + 2}, 256']
fills.append((ep_span('n1', 0.6)[1] + 2, gstart[mark['Q']], r0))

qe = []
for u in range(2):
    qe += [f'v_mul_f32 v{vT2}, {f2u(QS / C0)}, v{K0 + u}', f'v_mul_f32 v{vT3}, v{vLC}, v{K0 + u}']
    for tile in range(3):
        A = QACC + 8 * tile + 4 * u
        f = vT3 if tile == 2 else vT2
        qe += [f'v_mul_f32 v{A + j}, v{f}, v{A + j}' for j in range(4)]
        qe += [f'v_cvt_pk_bf16_f32 v{A}, v{A}, v{A + 1}', f'v_cvt_pk_bf16_f32 v{A + 1}, v{A + 2}, v{A + 3}']
        qe += [f'ds_write_b64 v{vSTB if tile == 2 else vSTA}, {v(A, 2)} offset:{u * 1152 + (40 if tile == 1 else 0)}']
    A = QACC + 16 + 4 * u
    if u == 1:
        qe += [f'v_xor_b32 v{vKA}, 256, v{vKA}'] + [f'v_xor_b32 v{vVA + j}, 32, v{vVA + j}' for j in range(4)]
    qe += [f'v_mov_b32 v{vT2}, 0x3f803f80',
           f'v_cndmask_b32 v{A + 2}, v{A}, v{A + 1}, s[{sMK4}:{sMK4 + 1}]',
           f'v_cndmask_b32 v{A + 3}, v{A + 1}, v{vT2}, s[{sMK4}:{sMK4 + 1}]',
           T(f'buffer_store_dwordx2 {v(A + 2, 2)}, v{vKA}, {srd(SWS)}, s9 offen sc1', 'kvst'),
           f'v_cndmask_b32 v{A}, v{A}, v{vT2}, s[{sMK5}:{sMK5 + 1}]',
           T(f'buffer_store_short v{A}, v{vVA}, {srd(SWS)}, s9 offen sc1', 'kvst'),
           T(f'buffer_store_short_d16_hi v{A}, v{vVA + 1}, {srd(SWS)}, s9 offen sc1', 'kvst'),
           T(f'buffer_store_short v{A + 1}, v{vVA + 2}, {srd(SWS)}, s9 offen sc1', 'kvst'),
           T(f'buffer_store_short_d16_hi v{A + 1}, v{vVA + 3}, {srd(SWS)}, s9 offen sc1', 'kvst')]
g0 = gelu_full(0)
NQ = 17 * 3
fills.append((gstart[mark['Q']] + 4, gstart[mark['R1']], g0[:NQ]))
fills.append((gstart[mark['R1']] + 4, gstart[mark['R2']], qe + g0[NQ:]))
fills.append((gstart[mark['R2']] + 4, gstart[mark['R3']], gelu_full(1)))
fills.append((gstart[mark['R3']] + 4, gstart[mark['RH']], gelu_full(2)))
fills.append((gstart[mark['RH']] + 4, ep_start['d0'], gelu_full(3)))
fills.append((ep_start['d0'], gstart[mark['D0']], flat(hx_write(range(12, 16)))))
gh = []
for u in range(4):
    for pr in range(2):
        gh += gelu_pair(ACC0 + 4 * u + 2 * pr, ACC0 + 16 + 4 * u + 2 * pr, u, HH + 2 * u + pr)
    gh.append(f'ds_write_b64 v{vH8W if u < 2 else vH8R}, {v(HH + 2 * u, 2)} offset:{49152 + 4096 + (u & 1) * 1024}')
fills.append((gstart[mark['D0']] + 2, BY - 1, gh))

for i, x in enumerate(aux[ep_start['n7'] - 1]):
    if isinstance(x, tuple):
        aux[ep_start['n7'] - 1][i] = ('BAR', x[1] + ['kvst'])
spread([[f'v_lshl_or_b32 v{vT2}, s{sW}, 6, v{vL}'], [f'v_min_u32 v{vT2}, 1, v{vT2}'], [f'v_lshlrev_b32 v{vT2}, 30, v{vT2}'],
        [f'v_mov_b32 v{vT3}, 1'], [f'buffer_atomic_add v{vT3}, v{vT2}, {srd(SB)}, 0 offen sc1']],
       ep_start['n7'], ep_start['n7'] + 10)

vPS = K0
QA, QB, QR = 10, 14, 18
ps_setup = f'''s_lshl_b32 s{sT2}, s{sMB}, 4
s_add_u32 s{sT2}, s{sT2}, s{sS}
s_xor_b32 s{sT3}, s{sT2}, 16
s_mul_i32 s{sT2}, s{sT2}, 36864
s_mul_i32 s{sT3}, s{sT3}, 36864
s_and_b32 s{sCNT}, s{sW}, 1
s_lshl_b32 s{sCNT}, s{sCNT}, 11
v_lshl_add_u32 v{vPS}, v{vL}, 4, s{sCNT}
v_add_u32 v{vPS + 1}, s{sT3}, v{vPS}
v_add_u32 v{vPS}, s{sT2}, v{vPS}'''.split('\n')


def part_out(r):
    acc = DACC + 32 * (r % 2)
    stg = STG + 16 * (r % 2)
    out = [f's_mov_b32 s{sT2}, {WS_P + r * 4096}']
    for c in range(2):
        for blk in range(2):
            d = stg + 8 * c + 4 * blk
            for uu in range(2):
                A = acc + 16 * c + 4 * (2 * blk + uu)
                out += [f'v_cvt_pk_bf16_f32 v{d + 2 * uu}, v{A}, v{A + 1}', f'v_cvt_pk_bf16_f32 v{d + 2 * uu + 1}, v{A + 2}, v{A + 3}']
            out.append(T(f'buffer_store_dwordx4 {v(d, 4)}, v{vPS + blk}, {srd(SWS)}, s{sT2} offen offset:{1024 * c} sc1', 'pst'))
    return out


vKB, vKRB, vVB, vDL, vIDX = ACC0, ACC0 + 1, ACC0 + 2, ACC0 + 6, ACC0 + 8
q_rb = f'''s_mul_i32 s{sT3}, s{sW}, 2304
s_add_u32 s{sT3}, s{sT3}, {L_STASH}
v_and_b32 v{vT0}, 31, v{vL}
v_lshrrev_b32 v{vT1}, 5, v{vL}
v_mul_u32_u24 v{vT2}, 72, v{vT0}
v_add_u32 v{vT2}, s{sT3}, v{vT2}
v_mul_u32_u24 v{vIDX}, 36, v{vT1}
v_add_u32 v{vIDX}, v{vIDX}, v{vT2}
v_lshl_add_u32 v{vT2}, v{vT1}, 4, v{vT2}
ds_read2_b64 {v(QA, 4)}, v{vT2} offset0:0 offset1:1
ds_read2_b32 {v(QB, 2)}, v{vT2} offset0:9 offset1:10
ds_read2_b32 {v(QB + 2, 2)}, v{vT2} offset0:11 offset1:12
ds_read_b32 v{QR}, v{vIDX} offset:32
v_mov_b32 v{QR + 1}, 0'''.split('\n')
att_setup = f'''v_lshlrev_b32 v{vKB}, 4, v{vL}
v_add_u32 v{vKB}, {L_KV0}, v{vKB}
v_and_b32 v{vT0}, 31, v{vL}
v_lshrrev_b32 v{vT1}, 5, v{vL}
v_lshlrev_b32 v{vKRB}, 4, v{vT0}
v_add_u32 v{vKRB}, {L_KV0 + 2048}, v{vKRB}'''.split('\n')
att_setup += [[f'v_cmp_eq_u32 vcc, 22, v{vT0}', 's_nop 1', f'v_cndmask_b32 v{vT0}, v{vT0}, 18, vcc']]
att_setup += f'''v_bfe_u32 v{vT2}, v{vT0}, 1, 3
v_xor_b32 v{vT2}, v{vT2}, v{vT1}
v_lshlrev_b32 v{vT2}, 4, v{vT2}
v_lshl_add_u32 v{vT2}, v{vT0}, 7, v{vT2}
v_add_u32 v{vT2}, {L_KV0 + 2560}, v{vT2}
v_mov_b32 v{vT1}, {L_OOR}
v_mov_b32 v{vDL}, {(-L_KV0) & 0xffffffff}
v_mov_b32 v{vDL + 1}, {13 * REC}'''.split('\n')
att_setup += [[f'v_cmp_lt_u32 vcc, 18, v{vT0}', 's_nop 1', f'v_cndmask_b32 v{vVB}, v{vT2}, v{vT1}, vcc',
               f'v_cndmask_b32 v{vDL}, v{vDL}, 0, vcc', f'v_cndmask_b32 v{vDL + 1}, v{vDL + 1}, 0, vcc']]
att_setup += [f'v_xor_b32 v{vVB + f}, {32 * f}, v{vVB}' for f in range(1, 4)]
att_setup += [f'v_mov_b32 v{vIDX}, 0xdddddddd']
for r in range(1, 9):
    extra = {1: ps_setup, 2: q_rb, 3: att_setup}.get(r, [])
    fl = (extra + part_out(r - 1)) if r == 1 else (part_out(r - 1) + extra)
    fills.append((gstart[mark[f'D{r}']] + 4, gstart[mark[f'D{r + 1}' if r < 8 else 'END']] - 2, fl))


def c_of(x):
    if isinstance(x, list):
        return sum(c_of(y) for y in x)
    if isinstance(x, tuple):
        return 12
    if isinstance(x, Ins):
        return 4 if x.pseudo else cost(x.text)
    if x.endswith(':'):
        return 0
    return cost(x)


auxc = [c_of(a_) for a_ in aux]
for i in range(1, NM):
    auxc[i - 1] += c_of(pre[i])
fillat = [[] for _ in range(NM)]
for lo, hi, fl in fills:
    tot = c_of(fl)
    a0, a1 = 0.0, 4000.0
    for _ in range(50):
        L = (a0 + a1) / 2
        if sum(max(0.0, L - auxc[i]) for i in range(lo, hi)) >= tot:
            a1 = L
        else:
            a0 = L
    L = a1
    gi = 0
    credit = 0.0
    for i in range(lo, hi):
        credit += max(0.0, L - auxc[i])
        while gi < len(fl) and credit >= c_of(fl[gi]) / 2:
            credit -= c_of(fl[gi])
            fillat[i].append(fl[gi])
            gi += 1
    fillat[hi - 1] += fl[gi:]

E(groups[0]['r'][:2])
E(first_rb[:2])
E(groups[0]['r'][2:])
E(first_rb[2:])
E(groups[1]['r'])
allm = [m for g in groups for m in g['m']]
stamp_at = {gstart[mark[k]]: k for k in ('Q', 'R1', 'R2', 'R3', 'RH', 'D0', 'D1', 'D5')}
est = 0
for i in range(NM):
    if i in stamp_at:
        E(stamp(stamp_at[i]))
    E(pre[i])
    E(allm[i])
    bar = None
    for x in aux[i]:
        if isinstance(x, tuple):
            bar = x
        else:
            E(x)
    E(fillat[i])
    if bar:
        E(barrier(bar[1]))
    est += max(16, 8 + auxc[i] + c_of(fillat[i]))
print('stream estimate cycles', est, 'mfma', NM)
E(stamp('down_end'))

S0 = 192
OA, OB = 96, 112
KM = 24
KRM = 32
VF = 72
XR = 40
vOUT = 50
vG = 55
PV = 137 + 3
NPA = 23


def sbuf(t):
    return S0 + 32 * ((t + 1) % 2)


def rec_win(beta):
    if beta < 10:
        return 0, beta * REC
    if beta < 23:
        return 1, (beta - 10) * REC
    return 2, (beta - 23) * REC


win = {'k': 0, 'r': 0, 0: 0, 1: 0, 2: 0, 3: 0}


def bump(which, w_):
    out = []
    while win[which] < w_:
        if which == 'k' or which == 'r':
            reg = vKB if which == 'k' else vKRB
            out.append(f'v_add_u32 v{reg}, {((-L_KV0) & 0xffffffff) if win[which] == 0 else 13 * REC}, v{reg}')
        else:
            out.append(f'v_add_u32 v{vVB + which}, v{vDL + win[which]}, v{vVB + which}')
        win[which] += 1
    return out


def rd_k(t):
    w_, o = rec_win(t >> 1)
    return bump('k', w_) + [f'ds_read_b128 {v(KM + 4 * (t % 2), 4)}, v{vKB} offset:{o + (t & 1) * 1024}']


def rd_kr(beta):
    w_, o = rec_win(beta)
    return bump('r', w_) + [f'ds_read_b128 {v(KRM + 4 * (beta % 2), 4)}, v{vKRB} offset:{o}']


def rd_v(t, i):
    w_, o = rec_win(t >> 1)
    f = 2 * (t & 1) + i
    return bump(f, w_) + [f'ds_read_b128 {v(VF + 8 * (t % 3) + 4 * i, 4)}, v{vVB + f} offset:{o}']


def qk2b(t, S):
    return f'v_mfma_f32_32x32x4_2b_bf16 {v(S, 32)}, {v(KRM + 4 * ((t >> 1) % 2) + 2 * (t & 1), 2)}, {v(QR, 2)}, 0'


def qkm(t, S, hd):
    return f'v_mfma_f32_32x32x16_bf16 {v(S + 16 * hd, 16)}, {v(KM + 4 * (t % 2), 4)}, {v(QB if hd else QA, 4)}, {v(S + 16 * hd, 16)}'


def pv(t, hd, i):
    return f'v_smfmac_f32_32x32x32_bf16 {v(OB if hd else OA, 16)}, {v(VF + 8 * (t % 3) + 4 * i, 4)}, {v(sbuf(t) + 16 * hd + 8 * i, 8)}, v{vIDX}'


def set_m(mA, mB, shift):
    return [f'v_permlane32_swap_b32 v{mA}, v{mB}', f'v_max_f32 v{mA}, v{mA}, v{mB}',
            f'v_sub_f32 v{mA}, {f2u(-shift)}, v{mA}', f'v_cvt_pk_bf16_f32 v{mB}, v{mA}, v{mA}',
            f'v_and_b32 v{mB}, 0xffff0000, v{mB}', f'v_sub_f32 v{mA}, v{mA}, v{mB}',
            f'v_cvt_pk_bf16_f32 v{QR + 1}, v{mB}, v{mA}']


E(rd_kr(0) + rd_k(0) + rd_k(1))
po = part_out(8)
E(qk2b(0, sbuf(0)))
E(po)
E(rd_v(0, 0) + rd_v(0, 1))
E(qkm(0, sbuf(0), 0))
E([f'v_mov_b32 v{OA + i}, 0' for i in range(8)])
E(qkm(0, sbuf(0), 1))
E([f'v_mov_b32 v{OA + i}, 0' for i in range(8, 32)])
for hd in range(2):
    S = sbuf(0) + 16 * hd
    E(f'v_max3_f32 v{hd}, v{S}, v{S + 1}, v{S + 2}')
    for i in range(3, 15, 2):
        E(f'v_max3_f32 v{hd}, v{hd}, v{S + i}, v{S + i + 1}')
    E(f'v_max_f32 v{hd}, v{hd}, v{S + 15}')
E(set_m(0, 1, OPT['shift']))
E(qk2b(0, sbuf(0)))
fin_setup = []
E(f'''s_and_b32 s{sT0}, s{sS}, 3
s_lshl_b32 s{sT1}, s{sM}, 2
s_add_u32 s4, s{sT0}, s{sT1}
s_lshr_b32 s5, s{sS}, 2
s_mul_i32 s6, s4, 36864
s_mul_i32 s{sT0}, s5, 288
s_add_u32 s6, s6, s{sT0}
s_mov_b32 s{SA}, s22
s_mov_b32 s{SA + 1}, s23
s_mov_b32 s{SA + 2}, 2359296
v_lshl_or_b32 v0, s{sW}, 6, v{vL}
v_mov_b32 v3, {OOB}''')
for u in range(5):
    E(f'''v_add_u32 v1, {256 * u}, v0
v_mul_u32_u24 v2, 1821, v1
v_lshrrev_b32 v2, 16, v2
v_mul_u32_u24 v2, 864, v2
v_lshl_add_u32 v{vOUT + u}, v1, 3, v2''')
    if u == 1:
        E(qkm(0, sbuf(0), 0))
    if u == 3:
        E(qkm(0, sbuf(0), 1))
E(f'''v_cmp_lt_u32 vcc, 127, v0
s_nop 1
v_cndmask_b32 v{vOUT + 4}, v{vOUT + 4}, v3, vcc
s_lshl_b32 s7, s5, 2
s_add_u32 s7, s7, s{sW}
s_mul_i32 s7, s7, {41 * 1024}
s_add_u32 s7, s7, {WS_WOT}
s_lshl_b32 s8, s4, 2
s_add_u32 s8, s8, s{sW}
s_mul_i32 s10, s8, {4 * 2304}
s_add_u32 s10, s10, {WS_O}
s_mul_i32 s8, s8, {4 * 36864}
s_mul_i32 s{sT0}, s5, 9216
s_add_u32 s8, s8, s{sT0}
s_add_u32 s8, s8, {WS_P}''')
E(rd_v(1, 0) + rd_v(1, 1) + rd_k(2) + rd_kr(1))
E(stamp('att_start'))


def pfrag(i, nu):
    n = 9 * i + nu
    return a(164 + 4 * n, 4) if n < NPA else v(PV + 4 * (n - NPA), 4)


extra = [[] for _ in range(64)]
items = []
for q in range(41):
    if q % 4 == 0 and q:
        items.append('s_add_u32 s7, s7, 4096')
    items.append(f'buffer_load_dwordx4 {a(4 * q, 4)}, v{vDMA2}, {srd(SWS)}, s7 offen offset:{1024 * (q % 4)} sc1')
items += [f'buffer_load_dwordx2 {v(XR + 2 * u, 2)}, v{vOUT + u}, {srd(SX)}, s6 offen' for u in range(5)]
T_FLAG, T_POLL0, T_POLL1 = 8, 20, 26
for i, x in enumerate(items):
    extra[T_FLAG + 1 + (i * (T_POLL1 - T_FLAG - 1)) // len(items)].append(x)
extra[T_FLAG] += flag_addr(vT0) + [f'v_mov_b32 v{vT1}, 1'] + barrier(['pst', 'kvB', 'kvC'], False) + \
    [f'buffer_store_dword v{vT1}, v{vT0}, {srd(SWS)}, s{sT1} offen sc1']
ldB = f'buffer_load_dword v{vT3}, v{vT2}, {srd(SWS)}, s9 offen sc1'
extra[T_POLL0] = [f'v_lshlrev_b32 v{vT2}, 2, v{vL}', f's_lshl_b32 s9, s{sM}, 8', f's_add_u32 s9, s9, {WS_FLAG}', ldB] + extra[T_POLL0]
poll_side('L_pb', ldB, vT3, '1')
extra[T_POLL1] += poll('L_pb', ldB, vT3, '1')
items = []
for i in range(4):
    for nu in range(9):
        if nu % 4 == 0:
            items.append(f's_add_u32 s{sT0}, s8, {i * 36864 + nu * 1024}')
        items.append(f'buffer_load_dwordx4 {pfrag(i, nu)}, v{vDMA2}, {srd(SWS)}, s{sT0} offen offset:{1024 * (nu % 4)} sc1')
for i, x in enumerate(items):
    extra[T_POLL1 + 1 + (i * (60 - T_POLL1 - 1)) // len(items)].append(x)

for t in range(64):
    S = sbuf(t)
    ex = lambda b, n: [f'v_exp_f32 v{S + b + i}, v{S + b + i}' for i in range(n)]
    nxt = t + 1 < 64
    if t > 0:
        E(pv(t - 1, 1, 1))
    E(ex(0, 4))
    if nxt:
        E(qk2b(t + 1, sbuf(t + 1)))
    E(ex(4, 8))
    E(pv(t, 0, 0))
    E(ex(12, 6))
    E(pv(t, 0, 1))
    E(ex(18, 4))
    if nxt:
        E(qkm(t + 1, sbuf(t + 1), 0))
    E(ex(22, 4))
    E(pv(t, 1, 0))
    E(extra[t])
    E(ex(26, 4))
    if nxt:
        E(qkm(t + 1, sbuf(t + 1), 1))
    E(ex(30, 2))
    rds = []
    E(P('waittag', (set(), True)))
    if t + 3 < 64:
        rds += rd_k(t + 3)
    if t + 2 < 64:
        rds += rd_v(t + 2, 0) + rd_v(t + 2, 1)
    if t % 2 == 1 and t + 3 < 64:
        rds += rd_kr((t + 3) >> 1)
    E(rds)
E(pv(63, 1, 1))
E(stamp('att_end'))

vOA_, vOB_ = 56, 57
E(o_addr(vOA_, vOB_, vT0))
for hd, O in enumerate((OA, OB)):
    E(f'v_add_f32 v{hd}, abs(v{O}), abs(v{O + 1})')
    for j in range(2, 10):
        E(f'v_add_f32 v{hd}, v{hd}, abs(v{O + j})')
E(f'''v_add_f32 v2, v{OA + 10}, v{OB + 10}
v_add_f32 v3, v0, v1
v_min_f32 v0, v0, v1
v_fma_f32 v2, v2, 4.0, v3
v_cmp_nlt_f32 vcc, {f2u(2.0 ** -100)}, v0
s_mov_b64 s[12:13], vcc
v_cmp_ngt_f32 vcc, {f2u(2.0 ** 122 if not OPT['force_fb'] else -1.0)}, v2
s_or_b64 vcc, vcc, s[12:13]
s_cbranch_scc1 L_fb
L_norm:''')
OP = 24
for hd, O in enumerate((OA, OB)):
    E(f'v_rcp_f32 v{hd}, v{O + 10}')
for hd, O in enumerate((OA, OB)):
    for j in range(10):
        E(f'v_mul_f32 v{O + j}, v{hd}, v{O + j}')
    for j in range(5):
        d = OP + 4 * hd + j if j < 4 else OP + 8 + hd
        E(f'v_cvt_pk_bf16_f32 v{d}, v{O + 2 * j}, v{O + 2 * j + 1}')
        E(f'v_min_u32 v{d}, -2, v{d}')
    E(f'buffer_store_dwordx4 {v(OP + 4 * hd, 4)}, v{vOA_}, {srd(SWS)}, s{sT0} offen offset:{1024 * hd} sc1')
E(f'buffer_store_dwordx2 {v(OP + 8, 2)}, v{vOB_}, {srd(SWS)}, s{sT0} offen offset:2048 sc1')
E(stamp('o_pub'))

SEL = 60
FA = 68
OF = 192
vOL, vOLR, vRW, vRR = 56, 57, 58, 34
E(f'''v_and_b32 v0, 15, v{vL}
v_lshrrev_b32 v1, 4, v{vL}
v_lshlrev_b32 v{vOL}, 4, v0
v_lshl_add_u32 v{vOL}, v1, 9, v{vOL}
v_mul_u32_u24 v{vOLR}, 2304, v1
v_lshl_add_u32 v{vOLR}, v0, 3, v{vOLR}
v_lshrrev_b32 v2, 2, v0
v_and_b32 v3, 1, v0
v_lshlrev_b32 v3, 4, v3
v_mov_b32 v{SEL + 2}, 0x3f80
v_lshlrev_b32 v3, v3, v{SEL + 2}
v_cmp_eq_u32 vcc, v1, v2
s_nop 1
v_cndmask_b32 v3, 0, v3, vcc
v_and_b32 v2, 2, v0
v_cmp_eq_u32 vcc, 0, v2
v_mov_b32 v{SEL + 2}, 0
v_mov_b32 v{SEL + 3}, 0
v_cndmask_b32 v{SEL}, 0, v3, vcc
v_cndmask_b32 v{SEL + 1}, v3, v{SEL + 2}, vcc
v_mov_b32 v{SEL + 4}, v{SEL}
v_mov_b32 v{SEL + 5}, v{SEL + 1}
s_mul_i32 s{sT0}, s{sW}, 18944
v_mul_u32_u24 v{vRW}, 592, v0
v_lshl_add_u32 v{vRW}, v1, 4, v{vRW}
v_add_u32 v{vRW}, s{sT0}, v{vRW}
s_add_u32 s11, s10, {2 * 2304}''')
oloads = []
for i in range(4):
    for tt in range(2):
        oloads.append(f'buffer_load_dwordx4 {v(OF + 8 * i + 4 * tt, 4)}, v{vOL}, {srd(SWS)}, s{10 + (i >> 1)} offen offset:{(i & 1) * 2304 + tt * 256} sc1')
for tt in range(2):
    oloads.append(f'buffer_load_dwordx2 {v(OF + 32 + 2 * tt, 2)}, v{vOLR}, {srd(SWS)}, s10 offen offset:{2048 + tt * 128} sc1')
misc = [f'v_lshl_or_b32 v0, s{sW}, 6, v{vL}']
for u in range(5):
    misc += [f'v_add_u32 v1, {256 * u}, v0', 'v_mul_u32_u24 v2, 1821, v1', 'v_lshrrev_b32 v2, 16, v2', 'v_add_u32 v2, v2, v1',
             f'v_lshlrev_b32 v{vRR + u}, 4, v2']
cnt = 0
for i in range(4):
    for nu in range(9):
        for tt in range(2):
            acc = FA + 8 * nu + 4 * tt
            E(mf(acc, v(SEL + 2 * (tt ^ (i >> 1)), 4), pfrag(i, nu), i == 0))
            if cnt < len(misc):
                E(misc[cnt])
            if 40 <= cnt < 50:
                E(oloads[cnt - 40])
            cnt += 1
E('s_barrier')
chk = [f'v_max3_u32 v0, v{OF}, v{OF + 1}, v{OF + 2}']
for i in range(3, 35, 2):
    chk.append(f'v_max3_u32 v0, v0, v{OF + i}, v{OF + i + 1}')
chk += [f'v_max_u32 v0, v0, v{OF + 35}', 'v_cmp_eq_u32 vcc, -1, v0']
E(chk)
E(['s_cmp_eq_u64 vcc, 0', 's_cbranch_scc0 L_pc_slow', 'L_pc_ok:'])
side.append(f'''L_pc_slow:
    s_mov_b32 s{sCNT}, 0
L_pc_loop:
    ''' + '\n    '.join(oloads) + '''
    s_waitcnt vmcnt(0)
    ''' + '\n    '.join(chk) + f'''
    s_add_u32 s{sCNT}, s{sCNT}, 1
    s_nop 4
    s_cmp_eq_u64 vcc, 0
    s_cbranch_scc1 L_pc_ok
    s_cmp_lt_u32 s{sCNT}, 0x4000
    s_cbranch_scc1 L_pc_loop
    s_branch L_pc_ok
''')
E(stamp('o_got'))


def red_write(nu, tt):
    return f'ds_write_b128 v{vRW}, {v(FA + 8 * nu + 4 * tt, 4)} offset:{tt * 16 * 592 + nu * 64}'


def rem_mf(k):
    nu, tt = k >> 1, k & 1
    acc = FA + 4 * k
    return f'v_mfma_f32_16x16x16_bf16 {v(acc, 4)}, {a(144 + 2 * nu, 2)}, {v(OF + 32 + 2 * tt, 2)}, {v(acc, 4)}'


pend = []
E([rem_mf(k) for k in range(7)])
for nu in range(9):
    for tt in range(2):
        acc = FA + 8 * nu + 4 * tt
        for i in range(4):
            E(mf(acc, a(4 * (4 * nu + i), 4), v(OF + 8 * i + 4 * tt, 4), False))
        if 2 * nu + tt + 7 < 18:
            E(rem_mf(2 * nu + tt + 7))
        pend.append((nu, tt))
        if len(pend) > 2:
            E(red_write(*pend.pop(0)))
for x in pend:
    E(red_write(*x))
E(barrier())
RD = 140
for u in range(5):
    for src in range(4):
        E(f'ds_read_b128 {v(RD + 16 * u + 4 * src, 4)}, v{vRR + u} offset:{src * 18944}')
for u in range(5):
    R = RD + 16 * u
    E([f'v_lshlrev_b32 v0, 16, v{XR + 2 * u}', f'v_and_b32 v1, 0xffff0000, v{XR + 2 * u}',
       f'v_lshlrev_b32 v2, 16, v{XR + 2 * u + 1}', f'v_and_b32 v3, 0xffff0000, v{XR + 2 * u + 1}'])
    for src in range(4):
        E([f'v_pk_add_f32 v[0:1], v[0:1], {v(R + 4 * src, 2)}', f'v_pk_add_f32 v[2:3], v[2:3], {v(R + 4 * src + 2, 2)}'])
    E([f'v_cvt_pk_bf16_f32 v{R}, v0, v1', f'v_cvt_pk_bf16_f32 v{R + 1}, v2, v3',
       f'buffer_store_dwordx2 {v(R, 2)}, v{vOUT + u}, {srd(SA)}, s6 offen'])
if OPT['stamp']:
    E('s_waitcnt vmcnt(0)')
    E(stamp('end'))
    E(f'''s_lshl_b32 s{sT0}, s{sM}, 4
s_add_u32 s{sT0}, s{sT0}, s{sS}
s_lshl_b32 s{sT0}, s{sT0}, 2
s_add_u32 s{sT0}, s{sT0}, s{sW}
s_lshl_b32 s{sT0}, s{sT0}, 8
s_add_u32 s{sT0}, s{sT0}, {WS_STAMP2}
v_lshlrev_b32 v0, 2, v{vL}
buffer_store_dword v{vSTAMP}, v0, {srd(SWS)}, s{sT0} offen''')
E('s_endpgm')
main = p.finalize()

q = Prog()
F = q.e
fK, fR, fV, fD = 58, 59, 60, 64
back = (L_KV0 - 13 * REC) & 0xffffffff


def fb_addr():
    out = [f'v_add_u32 v{fK}, {back}, v{vKB}', f'v_add_u32 v{fR}, {back}, v{vKRB}',
           f'v_add_u32 v2, v{vDL}, v{vDL + 1}']
    out += [f'v_sub_u32 v{fV + f}, v{vVB + f}, v2' for f in range(4)]
    out += [f's_mov_b32 s{sCNT}, 0']
    return out


def fb_next(label):
    return [f's_add_u32 s{sCNT}, s{sCNT}, 1', f's_cmp_eq_u32 s{sCNT}, 10',
            f's_mov_b32 s12, {REC}', f's_cmov_b32 s12, {(-(L_KV0 + 9 * REC)) & 0xffffffff}',
            f'v_add_u32 v{fK}, s12, v{fK}', f'v_add_u32 v{fR}, s12, v{fR}',
            f'v_mul_lo_u32 v2, v{fD}, s12'] + [f'v_add_u32 v{fV + f}, v2, v{fV + f}' for f in range(4)] + \
           [f's_cmp_lt_u32 s{sCNT}, 32', 's_nop 15', f's_cbranch_scc1 {label}']


def fb_qk(tile):
    return [f'ds_read_b128 {v(KM, 4)}, v{fK} offset:{1024 * tile}', f'ds_read_b128 {v(KRM, 4)}, v{fR}',
            f'v_mfma_f32_32x32x4_2b_bf16 {v(S0, 32)}, {v(KRM + 2 * tile, 2)}, {v(QR, 2)}, 0',
            f'v_mfma_f32_32x32x16_bf16 {v(S0, 16)}, {v(KM, 4)}, {v(QA, 4)}, {v(S0, 16)}',
            f'v_mfma_f32_32x32x16_bf16 {v(S0 + 16, 16)}, {v(KM, 4)}, {v(QB, 4)}, {v(S0 + 16, 16)}']


F('L_fb:')
F(['s_nop 15', f'v_min_u32 v{fD}, 1, v{vDL + 1}', f'v_mov_b32 v{QR + 1}, 0', 'v_mov_b32 v0, 0xff800000', 'v_mov_b32 v1, 0xff800000'])
F(fb_addr())
F('L_fb1:')
for tile in range(2):
    F(fb_qk(tile))
    for hd in range(2):
        for i in range(0, 16, 2):
            F(f'v_max3_f32 v{hd}, v{hd}, v{S0 + 16 * hd + i}, v{S0 + 16 * hd + i + 1}')
F(fb_next('L_fb1'))
F(set_m(0, 1, 0.0))
F([f'v_mov_b32 v{OA + i}, 0' for i in range(32)])
F(fb_addr())
F('L_fb2:')
for tile in range(2):
    F(fb_qk(tile))
    F([f'ds_read_b128 {v(VF + 4 * i, 4)}, v{fV + 2 * tile + i}' for i in range(2)])
    F([f'v_exp_f32 v{S0 + i}, v{S0 + i}' for i in range(32)])
    for hd in range(2):
        for i in range(2):
            F(f'v_smfmac_f32_32x32x32_bf16 {v(OB if hd else OA, 16)}, {v(VF + 4 * i, 4)}, {v(S0 + 16 * hd + 8 * i, 8)}, v{vIDX}')
F(fb_next('L_fb2'))
F(['s_nop 15', 's_branch L_norm'])
fb = q.finalize(False)

hdr = open('cdna_kernels/' + NAME + '.s.ref').read().split('; Override launch')[0]
text = hdr + f'''; Generated by dev/gen.py: one persistent workgroup per CU (128 tokens x 1/16 of the FFN width x 2 heads).
; @launch grid=(256,1,1) block=(256,1,1) lds=163840
.amdgcn_target "amdgcn-amd-amdhsa--gfx950"
.text
.globl {NAME}_kernel
.p2align 8
.type {NAME}_kernel,@function
{NAME}_kernel:
{main}
{''.join(side)}
{fb}
L_end:
    s_endpgm
.section .rodata,"a"
.p2align 6
.amdhsa_kernel {NAME}_kernel
  .amdhsa_next_free_vgpr 512
  .amdhsa_next_free_sgpr 102
  .amdhsa_accum_offset 256
  .amdhsa_group_segment_fixed_size 0
  .amdhsa_kernarg_size 96
  .amdhsa_user_sgpr_count 2
  .amdhsa_user_sgpr_kernarg_segment_ptr 1
  .amdhsa_system_sgpr_workgroup_id_x 1
.end_amdhsa_kernel
'''
open(sys.argv[1], 'w').write(text)
open(sys.argv[1] + '.stamps', 'w').write(' '.join(STAMPS))
print('bytes of source', len(text))
```

```python
import sys, struct, math
from asmlib import Prog, Ins, cost

NAME = 'parallel_sum__grouped_kv_mqa__geglu_ffn__prompt'
OPT = dict(stamp=0, touch=1, force_fb=0, shift=80.0)
for a in sys.argv[2:]:
    k, v = a.split('=')
    OPT[k] = float(v) if '.' in v else int(v)


def f2u(x):
    return '0x%08x' % struct.unpack('<I', struct.pack('<f', x))[0]


WS_KV = 0
WS_FLAG = 0x30000
WS_STAMP = 0x38000
WS_WOT = 0x40000
WS_O = 0x100000
WS_P = 0x400000
WS_STAMP2 = 0x3000000
WS_SIZE = 0x10000000
OOB = 0x40000000
REC = 4992

L_SS = 49152
L_QIMG = 98304
L_STASH = 153600
L_STATS = 162816
L_DSLOT = 36864
L_KV0 = 110592
L_OOR = 0x28000

SX, SW, SD, SWS, SA, SB = 28, 32, 36, 40, 44, 48
sM, sS, sW, sI1, sT0, sT1, sT2, sT3, sMB, sCNT = 52, 53, 54, 55, 56, 57, 58, 59, 60, 61
sP0, sP1 = 62, 63
TAB = 64
sQM = 4
sMK4, sMK5 = 100, 20


def srd(r):
    return f's[{r}:{r + 3}]'


vT0, vT1, vT2, vT3 = 0, 1, 2, 3
vDMA, vRB0, vRB1, vTCH = 4, 5, 6, 7
K0, K1, KR = 8, 12, 16
vDUM, vDMA2, vL, vSTAMP = 20, 21, 22, 23
WF = 24
XV = 48
H = 80
ACC0, ACC1 = 128, 192
XL = 80
PRE = 224


def v(r, n=1):
    return f'v{r}' if n == 1 else f'v[{r}:{r + n - 1}]'


def a(r, n=1):
    return f'a{r}' if n == 1 else f'a[{r}:{r + n - 1}]'


def xfrag(kap, u):
    i = 4 * kap + u
    return a(4 * i, 4) if i < 64 else v(XV + 4 * (i - 64), 4)


p = Prog()
P = Prog.P
E = p.e
_stamp = [0]
STAMPS = []


def T(text, tag=None, opt=False):
    return Ins(text, tag, opt)


def stamp(name):
    if not OPT['stamp']:
        return []
    i = _stamp[0]
    _stamp[0] += 1
    STAMPS.append(name)
    return ['s_memtime s[2:3]', 's_waitcnt lgkmcnt(0)', f'v_writelane_b32 v{vSTAMP}, s2, {i}',
            's_memrealtime s[2:3]', 's_waitcnt lgkmcnt(0)', f'v_writelane_b32 v{vSTAMP}, s2, {32 + i}']


def mk_srd(r, ptr, size):
    return [f's_mov_b32 s{r}, s{ptr}', f's_mov_b32 s{r + 1}, s{ptr + 1}', f's_mov_b32 s{r + 2}, {size}',
            f's_mov_b32 s{r + 3}, 0x20000']


def barrier(vtags=(), lds=True):
    return [P('waittag', (set(vtags), lds)), 's_barrier']


E(f'''
s_cmp_ge_u32 s2, 256
s_cbranch_scc1 L_end
s_load_dwordx16 s[4:19], s[0:1], 0
s_load_dwordx8 s[20:27], s[0:1], 64
v_lshrrev_b32 v1, 6, v0
v_and_b32 v{vL}, 63, v0
s_getpc_b64 s[{sT0}:{sT1}]
L_pc:
v_readfirstlane_b32 s{sW}, v1
s_lshr_b32 s{sT2}, s2, 3
''')
E(f'''
v_lshrrev_b32 v2, 3, v0
s_lshl_b32 s{sT3}, s{sT2}, 5
v_add_u32 v2, s{sT3}, v2
v_min_u32 v2, (L_end-L_pc)/128, v2
v_lshlrev_b32 v2, 7, v2
global_load_dword v{vDUM}, v2, s[{sT0}:{sT1}]
s_and_b32 s{sM}, s2, 1
s_lshl_b32 s{sM}, s{sM}, 3
s_and_b32 s{sT3}, s{sT2}, 7
s_add_u32 s{sM}, s{sM}, s{sT3}
s_bfe_u32 s{sS}, s2, 0x20001
s_lshl_b32 s{sS}, s{sS}, 2
s_lshr_b32 s{sT2}, s{sT2}, 3
s_add_u32 s{sS}, s{sS}, s{sT2}
s_lshl_b32 s{sCNT}, s2, 2
s_add_u32 s{sCNT}, s{sCNT}, s{sW}
s_bfe_u32 s{sI1}, s{sS}, 0x10001
s_lshl_b32 s{sMB}, s{sM}, 2
s_add_u32 s{sMB}, s{sMB}, s{sW}
v_lshrrev_b32 v1, 3, v{vL}
v_and_b32 v3, 7, v{vL}
v_mul_u32_u24 v0, 1152, v1
v_lshl_add_u32 v0, v3, 4, v0
''')
if OPT['stamp']:
    E(f'v_mov_b32 v{vSTAMP}, 0')
E(mk_srd(SX, 4, 2359296))
E(stamp('start'))
E(f's_and_b32 s{sT2}, s{sS}, 3')
for g in range(4):
    E(f'''
s_xor_b32 s{sT0}, s{sT2}, {g}
s_lshl_b32 s{sT1}, s{sMB}, 2
s_add_u32 s{sT0}, s{sT0}, s{sT1}
s_mul_i32 s{sT0}, s{sT0}, 9216
''')
    for c in range(9):
        E(f'buffer_load_dwordx4 {v(XL + 36 * g + 4 * c, 4)}, v0, {srd(SX)}, s{sT0} offen offset:{128 * c}')
E(f'''
s_cmp_ge_u32 s{sW}, 2
s_cselect_b32 s{SW}, s18, s16
s_cselect_b32 s{SW + 1}, s19, s17
s_mov_b32 s{SW + 2}, 5308416
s_mov_b32 s{SW + 3}, 0x20000
''')
E(mk_srd(SD, 20, 5308416))
E(mk_srd(SWS, 26, WS_SIZE))
E(mk_srd(SA, 6, 663552))
E(f'''
s_lshr_b32 s{sT0}, 0x2c, s{sS}
s_and_b32 s{sT0}, s{sT0}, 1
s_cmp_eq_u32 s{sT0}, 1
s_cselect_b32 s{SB}, s10, s8
s_cselect_b32 s{SB + 1}, s11, s9
s_mov_b32 s{SB + 2}, 20736
s_mov_b32 s{SB + 3}, 0x20000
s_mov_b32 s{sP0}, s12
s_mov_b32 s{sP1}, s13
''')
for st in range(9):
    for j in range(4):
        E(f's_mov_b32 s{TAB + 4 * st + j}, {(64 * st + 16 * j) * 9216 - 1024 * j}')
E(f'''
s_and_b32 s{sT0}, s{sW}, 1
s_mul_i32 s{sT1}, s{sS}, 576
s_and_b32 s{sT2}, s{sS}, 1
s_lshl_b32 s{sT3}, s{sT2}, 6
s_add_u32 s{sT3}, s{sT3}, s{sT1}
v_bfe_u32 v2, v{vL}, 4, 1
v_lshl_or_b32 v2, s{sT0}, 1, v2
v_lshlrev_b32 v2, 1, v2
v_xor_b32 v2, v2, v3
v_lshlrev_b32 v2, 4, v2
v_lshl_add_u32 v{vDMA}, s{sT0}, 3, v1
v_mul_u32_u24 v{vDMA}, 9216, v{vDMA}
v_add3_u32 v{vDMA}, v{vDMA}, v2, s{sT3}
''')
E(f'''
s_and_b32 s{sT1}, s{sM}, 7
s_lshl_b32 s{sT1}, s{sT1}, 1
s_add_u32 s{sT1}, s{sT1}, s{sT0}
s_mul_i32 s{sT1}, s{sT1}, 36
v_min_u32 v{vTCH}, 35, v{vL}
v_add_u32 v{vTCH}, s{sT1}, v{vTCH}
v_mul_u32_u24 v{vTCH}, 9216, v{vTCH}
v_add_u32 v{vTCH}, s{sT3}, v{vTCH}
''')
sWL = 19
E(f's_lshl_b32 s{sWL}, s{sW}, 12')


def dma_full(n, rnd_stage0, tag):
    out = []
    base = ((n + 2) % 3) * L_SS
    for q in range(3):
        st = rnd_stage0 + q
        out.append([f's_add_u32 m0, s{sWL}, {base + q * 16384}'])
        for j in range(4):
            out.append([T(f'buffer_load_dwordx4 v{vDMA}, {srd(SW)}, s{TAB + 4 * st + j} offen offset:{1024 * j} lds', tag)])
    return out


def flat(L):
    return [x for y in L for x in y]


E(flat(dma_full(0, 0, 'n0')))
if OPT['touch']:
    E(f'buffer_load_dword v{vDUM}, v{vTCH}, {srd(SW)}, 0 offen')

vQV = PRE
E(f'''
s_mul_i32 s{sT3}, s{sS}, 72
s_and_b32 s{sT3}, s{sT3}, 0xfffffff0
''')
for i in range(12):
    E(f'''
s_add_u32 s{sT0}, s{sW}, {4 * i}
s_min_u32 s{sT0}, s{sT0}, 44
s_mul_i32 s{sT1}, s{sT0}, 205
s_lshr_b32 s{sT1}, s{sT1}, 10
s_add_u32 s{sT1}, s{sT1}, s{sT0}
s_lshl_b32 s{sT1}, s{sT1}, 10
s_add_u32 s{sQM + i}, s{sT1}, {L_QIMG}
v_lshl_add_u32 v0, s{sT0}, 6, v{vL}
v_mul_u32_u24 v2, 13108, v0
v_lshrrev_b32 v2, 16, v2
v_mul_u32_u24 v{WF}, 5, v2
v_sub_u32 v0, v0, v{WF}
v_and_b32 v{WF}, 0xfffffff8, v2
v_bfe_u32 v{WF + 1}, v2, 1, 2
v_and_b32 v2, 1, v2
v_lshl_add_u32 v2, v2, 2, v{WF + 1}
v_add_u32 v2, v2, v{WF}
v_mul_u32_u24 v2, 1152, v2
v_lshl_add_u32 v2, v0, 4, v2
v_add_u32 v{vQV + i}, s{sT3}, v2
''')
E(f'''
s_and_b32 s{sT3}, s{sS}, 1
s_lshl_b32 s{sT3}, s{sT3}, 4
s_cmp_ge_u32 s{sS}, 4
s_cselect_b32 s{sT3}, 20, s{sT3}
''')
for i in range(3):
    E(f'''
s_add_u32 s{sT0}, s{sW}, {4 * i}
s_min_u32 s{sT0}, s{sT0}, 8
s_mul_i32 s{sT1}, s{sT0}, 6144
s_add_u32 s{sQM + 12 + i}, s{sT1}, {L_QIMG + 5120}
v_lshl_add_u32 v0, s{sT0}, 6, v{vL}
v_mul_u32_u24 v0, 36, v0
v_add_u32 v{vQV + 12 + i}, s{sT3}, v0
''')
vXW0, vXW1, vXR = PRE + 15, PRE + 16, PRE + 17
E(f'''
s_mul_i32 s{sT0}, s{sW}, 18432
s_and_b32 s{sT1}, s{sS}, 1
v_xor_b32 v0, v1, v3
v_lshl_or_b32 v0, s{sT1}, 3, v0
v_lshlrev_b32 v0, 4, v0
v_lshl_add_u32 v0, v3, 8, v0
v_add_u32 v{vXW0}, s{sT0}, v0
v_xor_b32 v{vXW1}, 128, v{vXW0}
v_lshrrev_b32 v2, 4, v{vL}
v_xor_b32 v0, v2, v{vL}
v_lshlrev_b32 v0, 4, v0
v_add_u32 v{vXR}, s{sT0}, v0
v_xor_b32 v{vXR + 1}, 64, v{vXR}
s_xor_b32 s{sT1}, s{sW}, 1
s_mul_i32 s{sT1}, s{sT1}, 18432
v_add_u32 v{vXR + 2}, s{sT1}, v0
v_xor_b32 v{vXR + 3}, 64, v{vXR + 2}
''')
vSW0, vSW1 = PRE + 21, PRE + 22
E(f'''
s_and_b32 s{sT1}, s{sS}, 1
s_lshl_b32 s{sT0}, s{sW}, 7
s_add_u32 s{sT0}, s{sT0}, {L_STATS}
v_lshl_or_b32 v0, s{sT1}, 3, v1
v_lshl_add_u32 v{vSW0}, v0, 2, s{sT0}
v_xor_b32 v{vSW1}, 32, v{vSW0}
''')
E(f'''
s_and_b32 s{sT0}, s{sW}, 1
v_bfe_u32 v0, v{vL}, 4, 1
v_bfe_u32 v2, v{vL}, 3, 2
v_lshlrev_b32 v{WF}, 1, s{sT0}
v_xor_b32 v2, v2, v{WF}
v_lshlrev_b32 v2, 5, v2
v_lshl_add_u32 v2, v0, 12, v2
v_lshrrev_b32 v0, 5, v{vL}
v_lshl_add_u32 v2, v0, 10, v2
v_bfe_u32 v0, v{vL}, 2, 2
v_lshl_add_u32 v2, v0, 7, v2
v_and_b32 v0, 3, v{vL}
v_lshl_add_u32 v2, v0, 3, v2
v_add_u32 v{vRB0}, {2 * L_SS}, v2
v_xor_b32 v{vRB1}, 32, v{vRB0}
''')
vQB, vQ3 = PRE + 23, PRE + 24
E(f'''
s_and_b32 s{sT0}, s{sS}, 1
s_lshl_b32 s{sT0}, s{sT0}, 3
s_add_u32 s{sT0}, s{sT0}, {L_QIMG}
v_lshrrev_b32 v0, 2, v{vL}
v_mul_u32_u24 v0, 160, v0
v_and_b32 v2, 3, v{vL}
v_add_u32 v0, s{sT0}, v0
v_lshl_add_u32 v{vQB}, v2, 3, v0
v_lshrrev_b32 v{WF}, 4, v{vL}
v_bfe_u32 v{WF + 1}, v{vL}, 2, 2
v_lshl_add_u32 v{WF}, v{WF}, 3, v{WF + 1}
v_and_b32 v{WF + 1}, 1, v{vL}
v_lshlrev_b32 v{WF + 1}, 3, v{WF + 1}
v_lshl_add_u32 v{WF}, v{WF}, 4, v{WF + 1}
v_cmp_lt_u32 vcc, 1, v2
''')
for par in range(2):
    for rd in range(2):
        E(f'''
v_add_u32 v{WF + 1}, {32 + par * 2560 + rd * 80}, v0
v_add_u32 v{WF + 2}, {L_QIMG + 5120 + par * 512 + rd * 64}, v{WF}
v_cndmask_b32 v{vQ3 + 2 * par + rd}, v{WF + 1}, v{WF + 2}, vcc
''')

sONE, sLO, sHI = sT0, sT1, sT2
E(f'''
s_mov_b32 s{sONE}, 0x3f803f80
s_mov_b32 s{sLO}, 0x00003f80
s_mov_b32 s{sHI}, 0x3f800000
''')


def red8(r):
    return [f'v_add_f32_dpp v{r}, v{r}, v{r} quad_perm:[1,0,3,2] row_mask:0xf bank_mask:0xf',
            f'v_add_f32_dpp v{r}, v{r}, v{r} quad_perm:[2,3,0,1] row_mask:0xf bank_mask:0xf',
            f'v_add_f32_dpp v{r}, v{r}, v{r} row_half_mirror row_mask:0xf bank_mask:0xf']


def ln_group(g, extra):
    X = XL + 36 * g
    t = WF
    pre = ['v_mov_b32 v0, 0', 'v_mov_b32 v3, 0']
    for i in range(36):
        pre.append(f'v_dot2c_f32_bf16 v0, s{sONE}, v{X + i}')
    pre += red8(0)
    pre += [f'v_mul_f32 v0, {f2u(1 / 576)}, v0', 'v_cvt_pk_bf16_f32 v1, v0, v0', 'v_and_b32 v1, 0xffff0000, v1',
            'v_sub_f32 v2, v0, v1', 'v_xor_b32 v1, 0x80000000, v1']
    k = 0
    for i, x in enumerate(pre):
        E(x)
        while k < len(extra) and k * len(pre) < (i + 1) * len(extra):
            E(extra[k])
            k += 1
    wr = vXW1 if g & 1 else vXW0
    for c in range(9):
        tt = t + 8 * (c & 1)
        for d in range(4):
            E(f'v_dot2_f32_bf16 v{tt + 2 * d}, v{X + 4 * c + d}, s{sLO}, v1')
            E(f'v_dot2_f32_bf16 v{tt + 2 * d + 1}, v{X + 4 * c + d}, s{sHI}, v1')
        if c > 0:
            for d in range(4):
                E(f'v_dot2c_f32_bf16 v3, v{X + 4 * c - 4 + d}, v{X + 4 * c - 4 + d}')
        for d in range(4):
            E(f'v_cvt_pk_bf16_f32 v{X + 4 * c + d}, v{tt + 2 * d}, v{tt + 2 * d + 1}')
        if c == 0 and g == 2:
            E(barrier())
        E(f'ds_write_b128 v{wr}, {v(X + 4 * c, 4)} offset:{2048 * c}')
    for d in range(4):
        E(f'v_dot2c_f32_bf16 v3, v{X + 32 + d}, v{X + 32 + d}')
    E(red8(3))
    E(f'''
v_mul_f32 v2, v2, v2
v_fma_f32 v3, v3, s{sT3}, -v2
v_max_f32 v3, 0, v3
v_cvt_pk_bf16_f32 v3, v3, v3
v_and_b32 v3, 0xffff0000, v3
v_add_f32 v3, {f2u(1e-5)}, v3
v_cvt_pk_bf16_f32 v3, v3, v3
v_and_b32 v3, 0xffff0000, v3
v_sqrt_f32 v3, v3
v_cvt_pk_bf16_f32 v3, v3, v3
v_and_b32 v3, 0xffff0000, v3
ds_write_b32 v{vSW1 if g & 1 else vSW0}, v3 offset:{64 * (g >> 1)}
''')


def readback(u0):
    out = []
    for kap in range(18):
        for who in range(2):
            out.append(T(f'ds_read_b128 {xfrag(kap, u0 + 2 * who)}, v{vXR + 2 * who + (kap & 1)} offset:{1024 * kap}', 'xrb'))
    return out


E(f's_mov_b32 s{sT3}, {f2u(1 / 576)}')
ln_group(0, [])
ln_group(1, [])
E(barrier())
ln_group(2, readback(0))
ln_group(3, [])
E(stamp('ln_done'))
E(barrier(['n0']))

groups = []


def wf(k, i):
    return WF + 8 * (k % 3) + 4 * i


def trr(k, i, rd, base, off):
    r = wf(k, i) + 2 * rd
    assert 0 <= off < 65536, off
    return f'ds_read_b64_tr_b16 {v(r, 2)}, v{base} offset:{off}'


def mf(acc, A, B, first):
    return f'v_mfma_f32_16x16x32_bf16 {v(acc, 4)}, {A}, {B}, {0 if first else v(acc, 4)}'


mark = {}
cur_slot = [2]


def add_full_round(rho, n0):
    acc = ACC0 if rho % 2 == 0 else ACC1
    mark[f'R{rho}'] = len(groups)
    for st in range(9):
        n = n0 + st // 3
        for tile in range(4):
            k = len(groups)
            c, mat = tile >> 1, tile & 1
            rd = []
            if st % 3 == 0 and mat == 0:
                sl = (n + 2) % 3
                if sl != cur_slot[0]:
                    rd.append(f'v_add_u32 v{vRB0 + c}, {((sl - cur_slot[0]) * L_SS) & 0xffffffff}, v{vRB0 + c}')
                if c == 1:
                    cur_slot[0] = sl
            for i in range(2):
                for r in range(2):
                    rd.append(trr(k, i, r, vRB0 + c, (st % 3) * 16384 + mat * 8192 + i * 2048 + r * 512))
            m = [mf(acc + 16 * tile + 4 * u, v(wf(k, i), 4), xfrag(2 * st + i, u), st == 0 and i == 0)
                 for u in range(4) for i in range(2)]
            groups.append(dict(m=m, r=rd, ep=f'n{n}'))


QACC = H + 16


def add_q():
    mark['Q'] = len(groups)
    for blk in range(9):
        for tile in range(3):
            k = len(groups)
            rd = []
            for i in range(2):
                for r in range(2):
                    if tile < 2:
                        rd.append(trr(k, i, r, vQB, blk * 6144 + i * 2560 + r * 80 + tile * 40))
                    else:
                        rd.append(trr(k, i, r, vQ3 + 2 * i + r, blk * 6144))
            m = [mf(QACC + 8 * tile + 4 * u, v(wf(k, i), 4), xfrag(2 * blk + i, u), blk == 0 and i == 0)
                 for u in range(2) for i in range(2)]
            groups.append(dict(m=m, r=rd, ep='n3'))


def add_half():
    mark['RH'] = len(groups)
    for st in range(9):
        for mat in range(2):
            k = len(groups)
            rd = []
            if st == 0 and mat == 0:
                rd += [f'v_lshrrev_b32 v{vRB0}, 4, v{vL}', f'v_bfe_u32 v{vT2}, v{vL}, 2, 2',
                       f'v_lshl_add_u32 v{vT2}, v{vRB0}, 3, v{vT2}', f'v_xor_b32 v{vRB0}, s{sW}, v{vRB0}',
                       f'v_and_b32 v{vRB0}, 1, v{vRB0}', f'v_lshlrev_b32 v{vRB0}, 5, v{vRB0}',
                       f'v_lshl_add_u32 v{vRB0}, v{vT2}, 6, v{vRB0}', f'v_and_b32 v{vT2}, 3, v{vL}',
                       f'v_lshl_add_u32 v{vRB0}, v{vT2}, 3, v{vRB0}']
            if st == 6 and mat == 0:
                rd.append(f'v_add_u32 v{vRB0}, 49152, v{vRB0}')
            part = st // 3
            for i in range(2):
                for r in range(2):
                    rd.append(trr(k, i, r, vRB0, (part % 2) * 24576 + mat * 12288 + (2 * (st % 3) + i) * 2048 + r * 256))
            m = [mf(ACC0 + 16 * mat + 4 * u, v(wf(k, i), 4), xfrag(2 * st + i, u), st == 0 and i == 0)
                 for u in range(4) for i in range(2)]
            groups.append(dict(m=m, r=rd, ep=f'h{part}'))


def hown(e):
    return H + 4 * e if e < 12 else ACC0 + 32 + 4 * (e - 12)


HH = ACC0 + 48
DB = ACC0 + 56
DACC = ACC1
STG = XV


def dslot(r):
    return ((r + 2) % 4) * L_DSLOT


def add_down(r):
    mark[f'D{r}'] = len(groups)
    acc = DACC + 32 * (r % 2)
    delta = (dslot(r) - dslot(r - 1)) & 0xffffffff
    for who in range(2):
        for c in range(2):
            for pr in range(2):
                k = len(groups)
                rd = []
                if r > 0 and pr == 0:
                    rd.append(f'v_add_u32 v{DB + 2 * who + c}, {delta}, v{DB + 2 * who + c}')
                for i in range(2):
                    for q in range(2):
                        rd.append(trr(k, i, q, DB + 2 * who + c, q * 18432 + (2 * pr + i) * 2048))
                m = []
                for u in range(4):
                    for i in range(2):
                        e = 4 * (2 * pr + i) + u
                        B = v(hown(e), 4) if who == 0 else a(4 * e, 4)
                        m.append(mf(acc + 16 * c + 4 * u, v(wf(k, i), 4), B, who == 0 and pr == 0 and i == 0))
                groups.append(dict(m=m, r=rd, ep=f'd{r}'))
    k = len(groups)
    rd = []
    for c in range(2):
        if r > 0:
            rd.append(f'v_add_u32 v{DB + 4 + c}, {delta}, v{DB + 4 + c}')
        for q in range(2):
            rd.append(trr(k, c, q, DB + 4 + c, q * 18432))
    m = [mf(acc + 16 * c + 4 * u, v(wf(k, c), 4), a(64 + 4 * u, 4), False) for c in range(2) for u in range(4)]
    groups.append(dict(m=m, r=rd, ep=f'd{r}'))


add_full_round(0, 0)
add_q()
add_full_round(1, 4)
add_full_round(2, 7)
add_full_round(3, 10)
add_half()
for r in range(9):
    add_down(r)
mark['END'] = len(groups)
NG = len(groups)

gstart = [0]
for g in groups:
    gstart.append(gstart[-1] + len(g['m']))
NM = gstart[-1]
aux = [[] for _ in range(NM)]
pre = [[] for _ in range(NM)]
ep_start = {}
ep_start['n0'] = 0


def ep_of(k):
    return groups[k]['ep'] if k < NG else 'att'


for k in range(NG):
    n = len(groups[k]['m'])
    b = gstart[k]
    pre[b].append(P('need', v(wf(k, 0), 8)))
    last_before_bar = k + 2 < NG and ep_of(k + 3) != ep_of(k + 2)
    if k + 2 < NG:
        rd = groups[k + 2]['r']
        span = n // 2 if (last_before_bar and n == 8) else n
        for i, x in enumerate(rd):
            aux[b + (i * span) // len(rd)].append(x)
    if last_before_bar:
        e = ep_of(k + 3)
        tags = {'att': ['kvD', 'kvA']}.get(e, [e])
        aux[b + n - 1].append(('BAR', tags))
        ep_start[e] = b + n


def spread(items, lo, hi):
    n = len(items)
    for i, it in enumerate(items):
        j = lo + (i * (hi - lo)) // n
        if j + 1 < hi and (i + 1 == n or lo + ((i + 1) * (hi - lo)) // n > j + 1) and len(aux[j + 1]) < len(aux[j]):
            j += 1
        if aux[j] and isinstance(aux[j][-1], tuple) and aux[j][-1][0] == 'BAR':
            aux[j][-1:-1] = it
        else:
            aux[j] += it


order = ['n%d' % i for i in range(13)] + ['h0', 'h1', 'h2'] + ['d%d' % i for i in range(9)] + ['att']


def ep_span(e, frac=0.7):
    lo = ep_start[e]
    hi = ep_start[order[order.index(e) + 1]] if e != 'att' else NM
    return lo, lo + max(1, int((hi - lo) * frac))


def touch(off):
    return [[f'buffer_load_dword v{vDUM}, v{vTCH}, {srd(SW)}, 0 offen offset:{off}']] if OPT['touch'] else []


adv = [[f'v_add_u32 v{vDMA}, 128, v{vDMA}']]

rb = readback(1)
RBN = 40
first_rb = rb[:4]
spread([[x] for x in rb[4:]], 0, RBN - 6)
aux[RBN - 1].append(('BAR', []))
spread(dma_full(1, 3, 'n1') + dma_full(2, 6, 'n2'), RBN, ep_start['n1'])
qd = []
for i in range(12):
    qd.append([f's_mov_b32 m0, s{sQM + i}'])
    qd.append([T(f'buffer_load_dwordx4 v{vQV + i}, {srd(SA)}, 0 offen lds', 'n3')])
for i in range(3):
    qd.append([f's_mov_b32 m0, s{sQM + 12 + i}'])
    qd.append([T(f'buffer_load_dwordx4 v{vQV + 12 + i}, {srd(SB)}, 0 offen lds', 'n3')])
spread(touch(128) + qd, *ep_span('n1', 0.6))
for n in range(4, 13):
    st0 = 3 * ((n - 4) % 3)
    items = (adv if st0 == 0 else []) + dma_full(n, st0, f'n{n}')
    if n == 6:
        items = touch(256) + items
    if n == 9:
        items = touch(384) + items
    spread(items, *ep_span(f'n{n - 2}'))


def dma_half(part):
    out = []
    for pr in range(3):
        out.append([f's_add_u32 m0, s{sT3}, {part * 24576 + pr * 4096}'])
        for i in range(2):
            out.append([T(f'buffer_load_dwordx4 v{vDMA2}, {srd(SW)}, s{TAB + 4 * (3 * part + pr) + 2 * i} offen offset:{2048 * i} lds', f'h{part}')])
    return out


half_setup = [[x] for x in f'''s_and_b32 s{sT0}, s{sW}, 1
s_lshr_b32 s{sT1}, s{sW}, 1
s_mul_i32 s{sT3}, s{sT1}, 12288
s_lshl_b32 s{sT1}, s{sT0}, 10
s_add_u32 s{sT3}, s{sT3}, s{sT1}
s_and_b32 s{sT1}, s{sS}, 1
s_xor_b32 s{sT1}, s{sT1}, 1
s_lshl_b32 s{sT1}, s{sT1}, 9
s_mul_i32 s{sT2}, s{sS}, 576
s_add_u32 s{sT2}, s{sT2}, s{sT1}
v_lshrrev_b32 v{vDMA2}, 2, v{vL}
v_lshl_add_u32 v{vDMA2}, s{sT0}, 4, v{vDMA2}
v_mul_u32_u24 v{vDMA2}, 9216, v{vDMA2}
v_bfe_u32 v{vT2}, v{vL}, 4, 2
v_and_b32 v{vT2}, 2, v{vT2}
v_xor_b32 v{vT2}, v{vT2}, v{vL}
v_and_b32 v{vT2}, 3, v{vT2}
v_lshlrev_b32 v{vT2}, 4, v{vT2}
v_add3_u32 v{vDMA2}, v{vDMA2}, v{vT2}, s{sT2}'''.split('\n')]
lo, hi = ep_span('n10', 1.0)
spread(half_setup, lo + int((hi - lo) * 0.72), hi - 2)
spread(dma_half(0) + dma_half(1), *ep_span('n11'))
wd_setup = [[x] for x in f'''s_and_b32 s{sT0}, s{sM}, 7
s_lshl_b32 s{sT0}, s{sT0}, 2
s_add_u32 s{sT0}, s{sT0}, s{sW}
s_mul_i32 s{sT0}, s{sT0}, {81 * 128}
s_mul_i32 s{sT1}, s{sS}, 331776
s_add_u32 s{sT0}, s{sT0}, s{sT1}
v_lshlrev_b32 v{vTCH}, 7, v{vL}'''.split('\n')]
if OPT['touch']:
    wd_setup += [[f'buffer_load_dword v{vDUM}, v{vTCH}, {srd(SD)}, s{sT0} offen'],
                 [f'v_min_u32 v{vTCH}, {16 * 128}, v{vTCH}'], [f's_add_u32 s{sT0}, s{sT0}, 8192'],
                 [f'buffer_load_dword v{vDUM}, v{vTCH}, {srd(SD)}, s{sT0} offen']]
wd_setup2 = [[x] for x in f'''v_lshrrev_b32 v{vDMA}, 3, v{vL}
v_lshl_add_u32 v{vDMA}, s{sW}, 3, v{vDMA}
v_mul_u32_u24 v{vDMA}, 1152, v{vDMA}
v_lshrrev_b32 v{vT2}, 3, v{vL}
v_and_b32 v{vT2}, 6, v{vT2}
v_xor_b32 v{vT2}, v{vT2}, v{vL}
v_and_b32 v{vT2}, 7, v{vT2}
v_lshlrev_b32 v{vT2}, 4, v{vT2}
v_add3_u32 v{vDMA}, v{vDMA}, v{vT2}, s{sT1}
s_and_b32 s{sT0}, s{sS}, 1
s_mul_i32 s{sT2}, s{sT0}, 36864
s_xor_b32 s{sT0}, s{sT0}, 1
s_mul_i32 s{TAB + 8}, s{sT0}, {256 * 1152}
s_mul_i32 s{sWL}, s{sW}, 9216'''.split('\n')]
wd_setup2 += [[f's_add_u32 s{TAB + kap}, s{sT2}, {kap * 36864 - 1024 * (kap % 4)}'] for kap in range(8)]
spread(wd_setup + dma_half(2) + wd_setup2, *ep_span('n12', 0.95))


def dma_down(r):
    out = [] if r == 0 else list(adv)
    for kap in range(9):
        if kap % 4 == 0:
            out.append([f's_add_u32 m0, s{sWL}, {dslot(r) + kap * 1024}'])
        out.append([T(f'buffer_load_dwordx4 v{vDMA}, {srd(SD)}, s{TAB + kap} offen offset:{1024 * (kap % 4)} lds', f'd{r}')])
    return out


vHW, vHR, vH8W, vH8R = vRB1, vTCH, ACC0 + 62, ACC0 + 63
dn_setup = [[x] for x in f'''v_bfe_u32 v{vT2}, v{vL}, 2, 3
v_lshlrev_b32 v{DB}, 7, v{vT2}
v_lshrrev_b32 v{vT2}, 1, v{vT2}
s_and_b32 s{sT0}, s{sW}, 1
s_lshl_b32 s{sT1}, s{sT0}, 1
v_xor_b32 v{vT2}, s{sT1}, v{vT2}
v_lshl_add_u32 v{DB}, v{vT2}, 5, v{DB}
v_and_b32 v{vT2}, 3, v{vL}
v_lshl_add_u32 v{DB}, v{vT2}, 3, v{DB}
v_lshrrev_b32 v{vT2}, 5, v{vL}
v_mul_u32_u24 v{vT2}, 9216, v{vT2}
v_add_u32 v{DB}, v{DB}, v{vT2}
v_add_u32 v{DB + 4}, {dslot(0) + 8192}, v{DB}
v_xor_b32 v{DB + 5}, 32, v{DB + 4}
s_lshl_b32 s{sT1}, s{sT0}, 10
s_add_u32 s{sT1}, s{sT1}, {dslot(0)}
s_xor_b32 s{sT2}, s{sT1}, 1024
v_add_u32 v{DB + 2}, s{sT2}, v{DB}
v_add_u32 v{DB}, s{sT1}, v{DB}
v_xor_b32 v{DB + 1}, 32, v{DB}
v_xor_b32 v{DB + 3}, 32, v{DB + 2}
s_mul_i32 s{sT1}, s{sW}, 6144
v_lshl_add_u32 v{vHW}, v{vL}, 4, s{sT1}
s_xor_b32 s{sT1}, s{sW}, 1
s_mul_i32 s{sT1}, s{sT1}, 6144
v_lshl_add_u32 v{vHR}, v{vL}, 4, s{sT1}
v_lshl_add_u32 v{vH8W}, s{sT0}, 3, v{vHW}
v_lshl_add_u32 v{vH8R}, s{sT0}, 3, v{vHR}'''.split('\n')]
assert dslot(0) % 2048 == 0
spread(dma_down(0), ep_start['h0'], gstart[mark['RH']] + 1)
spread(dn_setup, gstart[mark['RH']] + 1, ep_start['h1'] - 1)


def hx_write(es):
    return [[f'ds_write_b128 v{vHW}, {v(hown(e), 4)} offset:{(e // 6) * 24576 + (e % 6) * 1024}'] for e in es]


def hx_read(es):
    return [[f'ds_read_b128 {a(4 * (e ^ 2), 4)}, v{vHR} offset:{(e // 6) * 24576 + (e % 6) * 1024}'] for e in es]


spread(dma_down(1) + hx_write(range(0, 6)), *ep_span('h1', 0.85))
spread(hx_read(range(0, 6)) + hx_write(range(6, 12)), *ep_span('h2', 0.85))
BY = gstart[mark['D0'] + 4] - 1
spread(hx_read(range(6, 12)), ep_start['d0'], ep_start['d0'] + 12)
aux[BY].append(('BAR', []))
k8_reads = [[f'ds_read_b128 {a(64 + 4 * u, 4)}, v{vHW if u < 2 else vHR} offset:{49152 + 4096 + (u & 1) * 1024}'] for u in range(4)]
spread(hx_read(range(12, 16)) + k8_reads, BY + 1, BY + 7)
spread(dma_down(2), BY + 7, ep_start['d1'] - 1)
spread(dma_down(3) + dma_down(4), *ep_span('d1', 0.9))
for r in range(5, 9):
    spread(dma_down(r), *ep_span(f'd{r - 3}'))


def dma_kv(lds_base, src_base, npieces, tag):
    out = [[f's_mul_i32 s{sT0}, s{sW}, {npieces * 1024}']]
    for j in range(npieces):
        if j % 4 == 0:
            out.append([f's_add_u32 m0, s{sT0}, {lds_base + j * 1024}'])
            out.append([f's_add_u32 s{sT1}, s{sT0}, {WS_KV + src_base + j * 1024}'])
        out.append([T(f'buffer_load_dwordx4 v{vDMA2}, {srd(SWS)}, s{sT1} offen offset:{1024 * (j % 4)} sc1 lds', tag)])
    return out


def poll(label, load, reg, want):
    return [f'v_cmp_gt_u32 vcc, {want}, v{reg}', 's_cmp_eq_u64 vcc, 0', f's_cbranch_scc0 {label}_slow', f'{label}_ok:']


side = []


def poll_side(label, load, reg, want):
    side.append(f'''{label}_slow:
    s_mov_b32 s{sCNT}, 0
{label}_loop:
    s_sleep 4
    {load}
    s_waitcnt vmcnt(0)
    v_cmp_gt_u32 vcc, {want}, v{reg}
    s_add_u32 s{sCNT}, s{sCNT}, 1
    s_nop 4
    s_cmp_eq_u64 vcc, 0
    s_cbranch_scc1 {label}_ok
    s_cmp_lt_u32 s{sCNT}, 0x4000
    s_cbranch_scc1 {label}_loop
    s_branch {label}_ok
''')


ldA = f'buffer_load_dword v{vT3}, off, {srd(SB)}, 0 sc1'
spread([[ldA], [f'v_lshlrev_b32 v{vDMA2}, 4, v{vL}']], ep_start['d4'], ep_start['d4'] + 4)
poll_side('L_pa', ldA, vT3, '0x100')
spread([poll('L_pa', ldA, vT3, '0x100')] + dma_kv(L_KV0, 0, 13, 'kvD'), *ep_span('d6', 0.8))
spread(dma_kv(0, 10 * REC, 9, 'kvA'), *ep_span('d7'))
spread(dma_kv(L_DSLOT, 10 * REC + L_DSLOT, 9, 'kvB'), *ep_span('d8'))
spread(dma_kv(2 * L_DSLOT, 10 * REC + 2 * L_DSLOT, 9, 'kvC'), ep_start['att'], NM)

fills = []
C0 = -2.0 * math.log2(math.e) * math.sqrt(2.0 / math.pi)
C1 = C0 * 0.044715
QS = 18 ** -0.5 * math.log2(math.e)


def gelu_pair(g, u_, uu, dst):
    t0, t1 = vT0, vT1
    return [f'v_mul_f32 v{t0}, v{g}, v{g}', f'v_mul_f32 v{t1}, v{g + 1}, v{g + 1}',
            f'v_fma_f32 v{t0}, v{t0}, v{K1 + uu}, v{K0 + uu}', f'v_fma_f32 v{t1}, v{t1}, v{K1 + uu}, v{K0 + uu}',
            f'v_mul_f32 v{t0}, v{t0}, v{g}', f'v_mul_f32 v{t1}, v{t1}, v{g + 1}',
            f'v_exp_f32 v{t0}, v{t0}', f'v_exp_f32 v{t1}, v{t1}',
            f'v_mul_f32 v{u_}, v{g}, v{u_}',
            f'v_fma_f32 v{t0}, v{t0}, v{KR + uu}, v{KR + uu}', f'v_fma_f32 v{t1}, v{t1}, v{KR + uu}, v{KR + uu}',
            f'v_rcp_f32 v{t0}, v{t0}', f'v_rcp_f32 v{t1}, v{t1}',
            f'v_mul_f32 v{u_ + 1}, v{g + 1}, v{u_ + 1}',
            f'v_mul_f32 v{t0}, v{t0}, v{u_}', f'v_mul_f32 v{t1}, v{t1}, v{u_ + 1}',
            f'v_cvt_pk_bf16_f32 v{dst}, v{t0}, v{t1}']


def gelu_full(rho):
    acc = ACC0 if rho % 2 == 0 else ACC1
    out = []
    for c in range(2):
        for u in range(4):
            for pr in range(2):
                out += gelu_pair(acc + 32 * c + 4 * u + 2 * pr, acc + 32 * c + 16 + 4 * u + 2 * pr, u, hown(4 * rho + u) + 2 * c + pr)
    return out


vKA, vVA, vSTA, vSTB, vLC = H + 40, H + 41, H + 45, H + 46, H + 47
G0 = ACC1
r0 = []
r0 += f'''s_lshl_b32 s{sT0}, s{sW}, 7
s_add_u32 s{sT0}, s{sT0}, {L_STATS}
v_and_b32 v{G0}, 15, v{vL}
v_lshl_add_u32 v{G0 + 1}, v{G0}, 2, s{sT0}
v_xor_b32 v{G0 + 2}, 128, v{G0 + 1}
ds_read_b32 v{KR}, v{G0 + 1}
ds_read_b32 v{KR + 1}, v{G0 + 1} offset:64
ds_read_b32 v{KR + 2}, v{G0 + 2}
ds_read_b32 v{KR + 3}, v{G0 + 2} offset:64'''.split('\n')
r0 += f'''s_mov_b32 s{SB}, s{sP0}
s_mov_b32 s{SB + 1}, s{sP1}
s_mov_b32 s{SB + 2}, 663552
s_mul_i32 s{sT0}, s{sCNT}, 1599
s_lshr_b32 s{sT0}, s{sT0}, 16
s_mul_i32 s{sT1}, s{sT0}, 41
s_sub_u32 s{sT1}, s{sCNT}, s{sT1}
s_lshr_b32 s{sT2}, s{sT0}, 2
s_mul_i32 s{sT2}, s{sT2}, 288
s_and_b32 s{sT0}, s{sT0}, 3
s_mul_i32 s{sT0}, s{sT0}, {144 * 1152}
s_add_u32 s{sT2}, s{sT2}, s{sT0}
s_and_b32 s{sT0}, s{sT1}, 3
s_mul_i32 s{sT0}, s{sT0}, {36 * 1152}
s_lshr_b32 s{sT3}, s{sT1}, 2
s_lshl_b32 s{sT3}, s{sT3}, 5
s_add_u32 s{sT0}, s{sT0}, s{sT3}
s_lshl_b32 s{sT3}, s{sT1}, 6
s_add_u32 s{sT3}, s{sT3}, {16 * 1152 - 36 * 64}
s_mov_b32 s4, {72 * 1152}
s_mov_b32 s5, {36 * 1152}
s_mov_b32 s6, {18 * 1152}
s_mov_b32 s8, {18 * 1152 + 32}'''.split('\n')
r0 += [[f's_cmp_lt_u32 s{sT1}, 36', f's_cselect_b32 s{sT0}, s{sT0}, s{sT3}',
        f's_cmov_b32 s4, {18 * 1152}', f's_cmov_b32 s5, {4 * 1152}', f's_cmov_b32 s6, {2 * 1152}',
        f's_cselect_b32 s7, {8 * 1152}, 32', f's_cmov_b32 s8, {10 * 1152}']]
r0 += f'''s_add_u32 s{sT2}, s{sT2}, s{sT0}
s_add_u32 s6, s6, s{sT2}
s_add_u32 s7, s7, s{sT2}
s_add_u32 s8, s8, s{sT2}
v_lshrrev_b32 v{G0 + 3}, 5, v{vL}
v_mul_lo_u32 v{G0 + 3}, v{G0 + 3}, s4
v_bfe_u32 v{G0 + 8}, v{vL}, 4, 1
v_mul_lo_u32 v{G0 + 8}, v{G0 + 8}, s5
v_lshl_add_u32 v{G0 + 3}, v{G0}, 1, v{G0 + 3}
v_add_u32 v{G0 + 3}, v{G0 + 3}, v{G0 + 8}'''.split('\n')
for q, so in enumerate((sT2, 6, 7, 8)):
    r0.append(f'buffer_load_ushort v{G0 + 4 + q}, v{G0 + 3}, {srd(SB)}, s{so} offen')
    r0.append(f'buffer_load_ushort v{G0 + 24 + q}, v{G0 + 3}, {srd(SB)}, s{so} offen offset:1152')
for u in range(4):
    r0 += [f'v_rcp_f32 v{K0 + u}, v{KR + u}', f'v_mul_f32 v{KR + u}, v{KR + u}, v{KR + u}',
           f'v_mul_f32 v{K1 + u}, v{K0 + u}, v{K0 + u}', f'v_mul_f32 v{K0 + u}, {f2u(C0)}, v{K0 + u}',
           f'v_mul_f32 v{K1 + u}, {f2u(0.044715)}, v{K1 + u}', f'v_mul_f32 v{K1 + u}, v{K1 + u}, v{K0 + u}']


def o_addr(va, vb, t):
    return [f's_lshl_b32 s{sT1}, s{sI1}, 4', f'v_xor_b32 v{t}, s{sT1}, v{vL}', f'v_lshlrev_b32 v{va}, 4, v{t}',
            f'v_lshlrev_b32 v{vb}, 3, v{t}', f'v_lshrrev_b32 v{t}, 5, v{vL}', f'v_lshl_add_u32 v{vb}, v{t}, 30, v{vb}',
            f's_lshl_b32 s{sT0}, s{sMB}, 4', f's_add_u32 s{sT0}, s{sT0}, s{sS}', f's_mul_i32 s{sT0}, s{sT0}, 2304',
            f's_add_u32 s{sT0}, s{sT0}, {WS_O}']


def flag_addr(va):
    return [f'v_min_u32 v{va}, 1, v{vL}', f'v_lshlrev_b32 v{va}, 30, v{va}', f's_lshl_b32 s{sT1}, s{sM}, 4',
            f's_add_u32 s{sT1}, s{sT1}, s{sS}', f's_lshl_b32 s{sT1}, s{sT1}, 2', f's_add_u32 s{sT1}, s{sT1}, s{sW}',
            f's_lshl_b32 s{sT1}, s{sT1}, 2', f's_add_u32 s{sT1}, s{sT1}, {WS_FLAG}']


r0 += o_addr(G0 + 9, G0 + 10, G0 + 11)
r0 += [f'v_mov_b32 v{G0 + 12 + i}, -1' for i in range(4)]
r0 += [f'buffer_store_dwordx4 {v(G0 + 12, 4)}, v{G0 + 9}, {srd(SWS)}, s{sT0} offen sc1',
       f'buffer_store_dwordx4 {v(G0 + 12, 4)}, v{G0 + 9}, {srd(SWS)}, s{sT0} offen offset:1024 sc1',
       f'buffer_store_dwordx2 {v(G0 + 12, 2)}, v{G0 + 10}, {srd(SWS)}, s{sT0} offen offset:2048 sc1']
r0 += flag_addr(G0 + 11) + [f'v_mov_b32 v{G0 + 16}, 0', f'buffer_store_dword v{G0 + 16}, v{G0 + 11}, {srd(SWS)}, s{sT1} offen sc1']
g_, c_, key = G0 + 17, G0 + 18, G0 + 19
t1_, t2_ = G0 + 20, G0 + 21
r0 += f'''s_lshr_b32 s9, s{sMB}, 1
s_mul_i32 s9, s9, {REC}
s_add_u32 s9, s9, {WS_KV}
v_lshrrev_b32 v{g_}, 4, v{vL}
v_and_b32 v{c_}, 1, v{g_}
v_lshl_or_b32 v{key}, s{sI1}, 4, v{G0}
s_and_b32 s{sT0}, s{sW}, 1
s_lshl_b32 s{sT1}, s{sT0}, 10
s_lshl_b32 s{sT2}, s{sS}, 9
s_add_u32 s{sT1}, s{sT1}, s{sT2}
s_lshl_b32 s{sT2}, s{sT0}, 3
s_add_u32 s{sT2}, s{sT2}, 2040'''.split('\n')
r0 += [[f's_cmp_eq_u32 s{sS}, 4', f's_cselect_b32 s{sT1}, s{sT2}, s{sT1}', f's_cselect_b32 s{sT3}, 3, 4',
        f's_cselect_b64 s[{sMK4}:{sMK4 + 1}], -1, 0'],
       [f's_cmp_lt_u32 s{sS}, 2', f's_cselect_b32 s{sT3}, 2, s{sT3}']]
r0 += f'''v_lshl_add_u32 v{vKA}, v{key}, 4, s{sT1}
v_lshl_add_u32 v{vKA}, v{c_}, 3, v{vKA}
v_mov_b32 v{t2_}, {OOB}'''.split('\n')
r0 += [[f'v_cmp_gt_u32 vcc, s{sT3}, v{g_}', 's_nop 1', f'v_cndmask_b32 v{vKA}, v{vKA}, v{t2_}, vcc']]
r0 += [[f's_cmp_eq_u32 s{sS}, 3', f's_cselect_b32 s{sT1}, 8, 0', f's_cselect_b32 s{sT2}, 0, 64'],
       [f's_cmp_eq_u32 s{sS}, 2', f's_cselect_b32 s{sT2}, 0, s{sT2}'],
       [f's_cmp_eq_u32 s{sS}, 5', f's_cselect_b32 s{sT1}, 10, s{sT1}', f's_cselect_b32 s{sT2}, 16, s{sT2}',
        f's_cselect_b32 s{sMK5 + 1}, 0xffff, 0', f's_mov_b32 s{sMK5}, 0']]
r0 += [f'v_lshl_or_b32 v{key}, s{sT0}, 5, v{key}', f'v_lshl_add_u32 v{c_}, v{c_}, 2, s{sT1}']
for j in range(4):
    d = G0 + 22
    r0 += [f'v_add_u32 v{d}, {j}, v{c_}']
    if j == 0:
        r0 += [f'v_cndmask_b32 v{d}, v{d}, 18, s[{sMK5}:{sMK5 + 1}]']
    r0 += [f'v_bfe_u32 v{t1_}, v{d}, 1, 3', f'v_lshlrev_b32 v{t1_}, 3, v{t1_}', f'v_xor_b32 v{t1_}, v{t1_}, v{key}',
           f'v_lshlrev_b32 v{t1_}, 1, v{t1_}', f'v_lshl_add_u32 v{t1_}, v{d}, 7, v{t1_}',
           f'v_add_u32 v{t1_}, 2560, v{t1_}',
           [f'v_cmp_gt_u32 vcc, s{sT2}, v{d}', 's_nop 1', f'v_cndmask_b32 v{t1_}, v{t1_}, v{t2_}, vcc'],
           [f'v_cmp_gt_u32 vcc, 2, v{g_}', 's_nop 1', f'v_cndmask_b32 v{vVA + j}, v{t1_}, v{t2_}, vcc']]
r0 += f'''s_mul_i32 s{sT0}, s{sW}, 2304
s_add_u32 s{sT0}, s{sT0}, {L_STASH}
v_mul_u32_u24 v{t1_}, 72, v{G0}
v_add_u32 v{t1_}, s{sT0}, v{t1_}
v_lshl_add_u32 v{vSTA}, v{g_}, 3, v{t1_}
v_add_u32 v{t1_}, 32, v{t1_}
v_mov_b32 v{t2_}, {L_OOR}
v_mov_b32 v{d}, {f2u(1.0 / C0)}
v_mov_b32 v{vLC}, {f2u(QS / C0)}'''.split('\n')
r0 += [[f'v_cmp_gt_u32 vcc, 2, v{g_}', 's_nop 1', f'v_cndmask_b32 v{vSTB}, v{t2_}, v{t1_}, vcc',
        f'v_cndmask_b32 v{vLC}, v{d}, v{vLC}, vcc']]
r0 += [P('need', v(G0 + 27))] + [f'v_lshl_or_b32 v{G0 + 4 + q}, v{G0 + 24 + q}, 16, v{G0 + 4 + q}' for q in range(4)]
r0 += [[f's_cmp_lt_u32 s{sCNT}, 656', f's_cselect_b32 s{sT0}, 0, {OOB}'],
       f'v_lshl_add_u32 v{G0 + 3}, v{vL}, 4, s{sT0}', f's_lshl_b32 s{sT0}, s{sCNT}, 10', f's_add_u32 s{sT0}, s{sT0}, {WS_WOT}',
       f'buffer_store_dwordx4 {v(G0 + 4, 4)}, v{G0 + 3}, {srd(SWS)}, s{sT0} offen sc1',
       f's_mov_b32 s{SB}, s24', f's_mov_b32 s{SB + 1}, s25', f's_mov_b32 s{SB + 2}, 256']
fills.append((ep_span('n1', 0.6)[1] + 2, gstart[mark['Q']], r0))

qe = []
for u in range(2):
    qe += [f'v_mul_f32 v{vT2}, {f2u(QS / C0)}, v{K0 + u}', f'v_mul_f32 v{vT3}, v{vLC}, v{K0 + u}']
    for tile in range(3):
        A = QACC + 8 * tile + 4 * u
        f = vT3 if tile == 2 else vT2
        qe += [f'v_mul_f32 v{A + j}, v{f}, v{A + j}' for j in range(4)]
        qe += [f'v_cvt_pk_bf16_f32 v{A}, v{A}, v{A + 1}', f'v_cvt_pk_bf16_f32 v{A + 1}, v{A + 2}, v{A + 3}']
        qe += [f'ds_write_b64 v{vSTB if tile == 2 else vSTA}, {v(A, 2)} offset:{u * 1152 + (40 if tile == 1 else 0)}']
    A = QACC + 16 + 4 * u
    if u == 1:
        qe += [f'v_xor_b32 v{vKA}, 256, v{vKA}'] + [f'v_xor_b32 v{vVA + j}, 32, v{vVA + j}' for j in range(4)]
    qe += [f'v_mov_b32 v{vT2}, 0x3f803f80',
           f'v_cndmask_b32 v{A + 2}, v{A}, v{A + 1}, s[{sMK4}:{sMK4 + 1}]',
           f'v_cndmask_b32 v{A + 3}, v{A + 1}, v{vT2}, s[{sMK4}:{sMK4 + 1}]',
           T(f'buffer_store_dwordx2 {v(A + 2, 2)}, v{vKA}, {srd(SWS)}, s9 offen sc1', 'kvst'),
           f'v_cndmask_b32 v{A}, v{A}, v{vT2}, s[{sMK5}:{sMK5 + 1}]',
           T(f'buffer_store_short v{A}, v{vVA}, {srd(SWS)}, s9 offen sc1', 'kvst'),
           T(f'buffer_store_short_d16_hi v{A}, v{vVA + 1}, {srd(SWS)}, s9 offen sc1', 'kvst'),
           T(f'buffer_store_short v{A + 1}, v{vVA + 2}, {srd(SWS)}, s9 offen sc1', 'kvst'),
           T(f'buffer_store_short_d16_hi v{A + 1}, v{vVA + 3}, {srd(SWS)}, s9 offen sc1', 'kvst')]
g0 = gelu_full(0)
NQ = 17 * 3
fills.append((gstart[mark['Q']] + 4, gstart[mark['R1']], g0[:NQ]))
fills.append((gstart[mark['R1']] + 4, gstart[mark['R2']], qe + g0[NQ:]))
fills.append((gstart[mark['R2']] + 4, gstart[mark['R3']], gelu_full(1)))
fills.append((gstart[mark['R3']] + 4, gstart[mark['RH']], gelu_full(2)))
fills.append((gstart[mark['RH']] + 4, ep_start['d0'], gelu_full(3)))
fills.append((ep_start['d0'], gstart[mark['D0']], flat(hx_write(range(12, 16)))))
gh = []
for u in range(4):
    for pr in range(2):
        gh += gelu_pair(ACC0 + 4 * u + 2 * pr, ACC0 + 16 + 4 * u + 2 * pr, u, HH + 2 * u + pr)
    gh.append(f'ds_write_b64 v{vH8W if u < 2 else vH8R}, {v(HH + 2 * u, 2)} offset:{49152 + 4096 + (u & 1) * 1024}')
fills.append((gstart[mark['D0']] + 2, BY - 1, gh))

for i, x in enumerate(aux[ep_start['n7'] - 1]):
    if isinstance(x, tuple):
        aux[ep_start['n7'] - 1][i] = ('BAR', x[1] + ['kvst'])
spread([[f'v_lshl_or_b32 v{vT2}, s{sW}, 6, v{vL}'], [f'v_min_u32 v{vT2}, 1, v{vT2}'], [f'v_lshlrev_b32 v{vT2}, 30, v{vT2}'],
        [f'v_mov_b32 v{vT3}, 1'], [f'buffer_atomic_add v{vT3}, v{vT2}, {srd(SB)}, 0 offen sc1']],
       ep_start['n7'], ep_start['n7'] + 10)

vPS = K0
QA, QB, QR = 10, 14, 18
ps_setup = f'''s_lshl_b32 s{sT2}, s{sMB}, 4
s_add_u32 s{sT2}, s{sT2}, s{sS}
s_xor_b32 s{sT3}, s{sT2}, 16
s_mul_i32 s{sT2}, s{sT2}, 36864
s_mul_i32 s{sT3}, s{sT3}, 36864
s_and_b32 s{sCNT}, s{sW}, 1
s_lshl_b32 s{sCNT}, s{sCNT}, 11
v_lshl_add_u32 v{vPS}, v{vL}, 4, s{sCNT}
v_add_u32 v{vPS + 1}, s{sT3}, v{vPS}
v_add_u32 v{vPS}, s{sT2}, v{vPS}'''.split('\n')


def part_out(r):
    acc = DACC + 32 * (r % 2)
    stg = STG + 16 * (r % 2)
    out = [f's_mov_b32 s{sT2}, {WS_P + r * 4096}']
    for c in range(2):
        for blk in range(2):
            d = stg + 8 * c + 4 * blk
            for uu in range(2):
                A = acc + 16 * c + 4 * (2 * blk + uu)
                out += [f'v_cvt_pk_bf16_f32 v{d + 2 * uu}, v{A}, v{A + 1}', f'v_cvt_pk_bf16_f32 v{d + 2 * uu + 1}, v{A + 2}, v{A + 3}']
            out.append(T(f'buffer_store_dwordx4 {v(d, 4)}, v{vPS + blk}, {srd(SWS)}, s{sT2} offen offset:{1024 * c} sc1', 'pst'))
    return out


vKB, vKRB, vVB, vDL, vIDX = ACC0, ACC0 + 1, ACC0 + 2, ACC0 + 6, ACC0 + 8
q_rb = f'''s_mul_i32 s{sT3}, s{sW}, 2304
s_add_u32 s{sT3}, s{sT3}, {L_STASH}
v_and_b32 v{vT0}, 31, v{vL}
v_lshrrev_b32 v{vT1}, 5, v{vL}
v_mul_u32_u24 v{vT2}, 72, v{vT0}
v_add_u32 v{vT2}, s{sT3}, v{vT2}
v_mul_u32_u24 v{vIDX}, 36, v{vT1}
v_add_u32 v{vIDX}, v{vIDX}, v{vT2}
v_lshl_add_u32 v{vT2}, v{vT1}, 4, v{vT2}
ds_read2_b64 {v(QA, 4)}, v{vT2} offset0:0 offset1:1
ds_read2_b32 {v(QB, 2)}, v{vT2} offset0:9 offset1:10
ds_read2_b32 {v(QB + 2, 2)}, v{vT2} offset0:11 offset1:12
ds_read_b32 v{QR}, v{vIDX} offset:32
v_mov_b32 v{QR + 1}, 0'''.split('\n')
att_setup = f'''v_lshlrev_b32 v{vKB}, 4, v{vL}
v_add_u32 v{vKB}, {L_KV0}, v{vKB}
v_and_b32 v{vT0}, 31, v{vL}
v_lshrrev_b32 v{vT1}, 5, v{vL}
v_lshlrev_b32 v{vKRB}, 4, v{vT0}
v_add_u32 v{vKRB}, {L_KV0 + 2048}, v{vKRB}'''.split('\n')
att_setup += [[f'v_cmp_eq_u32 vcc, 22, v{vT0}', 's_nop 1', f'v_cndmask_b32 v{vT0}, v{vT0}, 18, vcc']]
att_setup += f'''v_bfe_u32 v{vT2}, v{vT0}, 1, 3
v_xor_b32 v{vT2}, v{vT2}, v{vT1}
v_lshlrev_b32 v{vT2}, 4, v{vT2}
v_lshl_add_u32 v{vT2}, v{vT0}, 7, v{vT2}
v_add_u32 v{vT2}, {L_KV0 + 2560}, v{vT2}
v_mov_b32 v{vT1}, {L_OOR}
v_mov_b32 v{vDL}, {(-L_KV0) & 0xffffffff}
v_mov_b32 v{vDL + 1}, {13 * REC}'''.split('\n')
att_setup += [[f'v_cmp_lt_u32 vcc, 18, v{vT0}', 's_nop 1', f'v_cndmask_b32 v{vVB}, v{vT2}, v{vT1}, vcc',
               f'v_cndmask_b32 v{vDL}, v{vDL}, 0, vcc', f'v_cndmask_b32 v{vDL + 1}, v{vDL + 1}, 0, vcc']]
att_setup += [f'v_xor_b32 v{vVB + f}, {32 * f}, v{vVB}' for f in range(1, 4)]
att_setup += [f'v_mov_b32 v{vIDX}, 0xdddddddd']
for r in range(1, 9):
    extra = {1: ps_setup, 2: q_rb, 3: att_setup}.get(r, [])
    fl = (extra + part_out(r - 1)) if r == 1 else (part_out(r - 1) + extra)
    fills.append((gstart[mark[f'D{r}']] + 4, gstart[mark[f'D{r + 1}' if r < 8 else 'END']] - 2, fl))


def c_of(x):
    if isinstance(x, list):
        return sum(c_of(y) for y in x)
    if isinstance(x, tuple):
        return 12
    if isinstance(x, Ins):
        return 4 if x.pseudo else cost(x.text)
    if x.endswith(':'):
        return 0
    return cost(x)


auxc = [c_of(a_) for a_ in aux]
for i in range(1, NM):
    auxc[i - 1] += c_of(pre[i])
fillat = [[] for _ in range(NM)]
for lo, hi, fl in fills:
    tot = c_of(fl)
    a0, a1 = 0.0, 4000.0
    for _ in range(50):
        L = (a0 + a1) / 2
        if sum(max(0.0, L - auxc[i]) for i in range(lo, hi)) >= tot:
            a1 = L
        else:
            a0 = L
    L = a1
    gi = 0
    credit = 0.0
    for i in range(lo, hi):
        credit += max(0.0, L - auxc[i])
        while gi < len(fl) and credit >= c_of(fl[gi]) / 2:
            credit -= c_of(fl[gi])
            fillat[i].append(fl[gi])
            gi += 1
    fillat[hi - 1] += fl[gi:]

E(groups[0]['r'][:2])
E(first_rb[:2])
E(groups[0]['r'][2:])
E(first_rb[2:])
E(groups[1]['r'])
allm = [m for g in groups for m in g['m']]
stamp_at = {gstart[mark[k]]: k for k in ('Q', 'R1', 'R2', 'R3', 'RH', 'D0', 'D1', 'D5')}
if OPT['stamp'] == 2:
    stamp_at = {ep_start[k]: k for k in order if k not in ('n0', 'n5', 'n6', 'n8', 'n9')}
    stamp_at[RBN] = 'rbn'
    stamp_at[BY + 1] = 'BY'
est = 0
for i in range(NM):
    if i in stamp_at:
        print('est before', stamp_at[i], est)
    if i in stamp_at:
        E(stamp(stamp_at[i]))
    E(pre[i])
    E(allm[i])
    bar = None
    for x in aux[i]:
        if isinstance(x, tuple):
            bar = x
        else:
            E(x)
    E(fillat[i])
    if bar:
        E(barrier(bar[1]))
    est += max(16, 8 + auxc[i] + c_of(fillat[i]))
print('stream estimate cycles', est, 'mfma', NM)
E(stamp('down_end'))

S0 = 192
OA, OB = 96, 112
KM = 24
KRM = 32
VF = 72
XR = 40
vOUT = 50
vG = 55
PV = 137 + 3
NPA = 23


def sbuf(t):
    return S0 + 32 * ((t + 1) % 2)


def rec_win(beta):
    if beta < 10:
        return 0, beta * REC
    if beta < 23:
        return 1, (beta - 10) * REC
    return 2, (beta - 23) * REC


win = {'k': 0, 'r': 0, 0: 0, 1: 0, 2: 0, 3: 0}


def bump(which, w_):
    out = []
    while win[which] < w_:
        if which == 'k' or which == 'r':
            reg = vKB if which == 'k' else vKRB
            out.append(f'v_add_u32 v{reg}, {((-L_KV0) & 0xffffffff) if win[which] == 0 else 13 * REC}, v{reg}')
        else:
            out.append(f'v_add_u32 v{vVB + which}, v{vDL + win[which]}, v{vVB + which}')
        win[which] += 1
    return out


def rd_k(t):
    w_, o = rec_win(t >> 1)
    return bump('k', w_) + [f'ds_read_b128 {v(KM + 4 * (t % 2), 4)}, v{vKB} offset:{o + (t & 1) * 1024}']


def rd_kr(beta):
    w_, o = rec_win(beta)
    return bump('r', w_) + [f'ds_read_b128 {v(KRM + 4 * (beta % 2), 4)}, v{vKRB} offset:{o}']


def rd_v(t, i):
    w_, o = rec_win(t >> 1)
    f = 2 * (t & 1) + i
    return bump(f, w_) + [f'ds_read_b128 {v(VF + 8 * (t % 3) + 4 * i, 4)}, v{vVB + f} offset:{o}']


def qk2b(t, S):
    return f'v_mfma_f32_32x32x4_2b_bf16 {v(S, 32)}, {v(KRM + 4 * ((t >> 1) % 2) + 2 * (t & 1), 2)}, {v(QR, 2)}, 0'


def qkm(t, S, hd):
    return f'v_mfma_f32_32x32x16_bf16 {v(S + 16 * hd, 16)}, {v(KM + 4 * (t % 2), 4)}, {v(QB if hd else QA, 4)}, {v(S + 16 * hd, 16)}'


def pv(t, hd, i):
    return f'v_smfmac_f32_32x32x32_bf16 {v(OB if hd else OA, 16)}, {v(VF + 8 * (t % 3) + 4 * i, 4)}, {v(sbuf(t) + 16 * hd + 8 * i, 8)}, v{vIDX}'


def set_m(mA, mB, shift):
    return [f'v_permlane32_swap_b32 v{mA}, v{mB}', f'v_max_f32 v{mA}, v{mA}, v{mB}',
            f'v_sub_f32 v{mA}, {f2u(-shift)}, v{mA}', f'v_cvt_pk_bf16_f32 v{mB}, v{mA}, v{mA}',
            f'v_and_b32 v{mB}, 0xffff0000, v{mB}', f'v_sub_f32 v{mA}, v{mA}, v{mB}',
            f'v_cvt_pk_bf16_f32 v{QR + 1}, v{mB}, v{mA}']


E(rd_kr(0) + rd_k(0) + rd_k(1))
po = part_out(8)
E(qk2b(0, sbuf(0)))
E(po)
E(rd_v(0, 0) + rd_v(0, 1))
E(qkm(0, sbuf(0), 0))
E([f'v_mov_b32 v{OA + i}, 0' for i in range(8)])
E(qkm(0, sbuf(0), 1))
E([f'v_mov_b32 v{OA + i}, 0' for i in range(8, 32)])
for hd in range(2):
    S = sbuf(0) + 16 * hd
    E(f'v_max3_f32 v{hd}, v{S}, v{S + 1}, v{S + 2}')
    for i in range(3, 15, 2):
        E(f'v_max3_f32 v{hd}, v{hd}, v{S + i}, v{S + i + 1}')
    E(f'v_max_f32 v{hd}, v{hd}, v{S + 15}')
E(set_m(0, 1, OPT['shift']))
E(qk2b(0, sbuf(0)))
fin_setup = []
E(f'''s_and_b32 s{sT0}, s{sS}, 3
s_lshl_b32 s{sT1}, s{sM}, 2
s_add_u32 s4, s{sT0}, s{sT1}
s_lshr_b32 s5, s{sS}, 2
s_mul_i32 s6, s4, 36864
s_mul_i32 s{sT0}, s5, 288
s_add_u32 s6, s6, s{sT0}
s_mov_b32 s{SA}, s22
s_mov_b32 s{SA + 1}, s23
s_mov_b32 s{SA + 2}, 2359296
v_lshl_or_b32 v0, s{sW}, 6, v{vL}
v_mov_b32 v3, {OOB}''')
for u in range(5):
    E(f'''v_add_u32 v1, {256 * u}, v0
v_mul_u32_u24 v2, 1821, v1
v_lshrrev_b32 v2, 16, v2
v_mul_u32_u24 v2, 864, v2
v_lshl_add_u32 v{vOUT + u}, v1, 3, v2''')
    if u == 1:
        E(qkm(0, sbuf(0), 0))
    if u == 3:
        E(qkm(0, sbuf(0), 1))
E(f'''v_cmp_lt_u32 vcc, 127, v0
s_nop 1
v_cndmask_b32 v{vOUT + 4}, v{vOUT + 4}, v3, vcc
s_lshl_b32 s7, s5, 2
s_add_u32 s7, s7, s{sW}
s_mul_i32 s7, s7, {41 * 1024}
s_add_u32 s7, s7, {WS_WOT}
s_lshl_b32 s8, s4, 2
s_add_u32 s8, s8, s{sW}
s_mul_i32 s10, s8, {4 * 2304}
s_add_u32 s10, s10, {WS_O}
s_mul_i32 s8, s8, {4 * 36864}
s_mul_i32 s{sT0}, s5, 9216
s_add_u32 s8, s8, s{sT0}
s_add_u32 s8, s8, {WS_P}''')
E(rd_v(1, 0) + rd_v(1, 1) + rd_k(2) + rd_kr(1))
E(stamp('att_start'))


def pfrag(i, nu):
    n = 9 * i + nu
    return a(164 + 4 * n, 4) if n < NPA else v(PV + 4 * (n - NPA), 4)


extra = [[] for _ in range(64)]
items = []
for q in range(41):
    if q % 4 == 0 and q:
        items.append('s_add_u32 s7, s7, 4096')
    items.append(f'buffer_load_dwordx4 {a(4 * q, 4)}, v{vDMA2}, {srd(SWS)}, s7 offen offset:{1024 * (q % 4)} sc1')
items += [f'buffer_load_dwordx2 {v(XR + 2 * u, 2)}, v{vOUT + u}, {srd(SX)}, s6 offen' for u in range(5)]
T_FLAG, T_POLL0, T_POLL1 = 8, 20, 26
for i, x in enumerate(items):
    extra[T_FLAG + 1 + (i * (T_POLL1 - T_FLAG - 1)) // len(items)].append(x)
extra[T_FLAG] += flag_addr(vT0) + [f'v_mov_b32 v{vT1}, 1'] + barrier(['pst', 'kvB', 'kvC'], False) + \
    [f'buffer_store_dword v{vT1}, v{vT0}, {srd(SWS)}, s{sT1} offen sc1']
ldB = f'buffer_load_dword v{vT3}, v{vT2}, {srd(SWS)}, s9 offen sc1'
extra[T_POLL0] = [f'v_lshlrev_b32 v{vT2}, 2, v{vL}', f's_lshl_b32 s9, s{sM}, 8', f's_add_u32 s9, s9, {WS_FLAG}', ldB] + extra[T_POLL0]
poll_side('L_pb', ldB, vT3, '1')
extra[T_POLL1] += poll('L_pb', ldB, vT3, '1')
items = []
for i in range(4):
    for nu in range(9):
        if nu % 4 == 0:
            items.append(f's_add_u32 s{sT0}, s8, {i * 36864 + nu * 1024}')
        items.append(f'buffer_load_dwordx4 {pfrag(i, nu)}, v{vDMA2}, {srd(SWS)}, s{sT0} offen offset:{1024 * (nu % 4)} sc1')
for i, x in enumerate(items):
    extra[T_POLL1 + 1 + (i * (60 - T_POLL1 - 1)) // len(items)].append(x)

for t in range(64):
    S = sbuf(t)
    ex = lambda b, n: [f'v_exp_f32 v{S + b + i}, v{S + b + i}' for i in range(n)]
    nxt = t + 1 < 64
    if t > 0:
        E(pv(t - 1, 1, 1))
    E(ex(0, 4))
    if nxt:
        E(qk2b(t + 1, sbuf(t + 1)))
    E(ex(4, 8))
    E(pv(t, 0, 0))
    E(ex(12, 6))
    E(pv(t, 0, 1))
    E(ex(18, 4))
    if nxt:
        E(qkm(t + 1, sbuf(t + 1), 0))
    E(ex(22, 4))
    E(pv(t, 1, 0))
    E(extra[t])
    E(ex(26, 4))
    if nxt:
        E(qkm(t + 1, sbuf(t + 1), 1))
    E(ex(30, 2))
    rds = []
    E(P('waittag', (set(), True)))
    if t + 3 < 64:
        rds += rd_k(t + 3)
    if t + 2 < 64:
        rds += rd_v(t + 2, 0) + rd_v(t + 2, 1)
    if t % 2 == 1 and t + 3 < 64:
        rds += rd_kr((t + 3) >> 1)
    E(rds)
E(pv(63, 1, 1))
E(stamp('att_end'))

vOA_, vOB_ = 56, 57
E(o_addr(vOA_, vOB_, vT0))
for hd, O in enumerate((OA, OB)):
    E(f'v_add_f32 v{hd}, abs(v{O}), abs(v{O + 1})')
    for j in range(2, 10):
        E(f'v_add_f32 v{hd}, v{hd}, abs(v{O + j})')
E(f'''v_add_f32 v2, v{OA + 10}, v{OB + 10}
v_add_f32 v3, v0, v1
v_min_f32 v0, v0, v1
v_fma_f32 v2, v2, 4.0, v3
v_cmp_nlt_f32 vcc, {f2u(2.0 ** -100)}, v0
s_mov_b64 s[12:13], vcc
v_cmp_ngt_f32 vcc, {f2u(2.0 ** 122 if not OPT['force_fb'] else -1.0)}, v2
s_or_b64 vcc, vcc, s[12:13]
s_cbranch_scc1 L_fb
L_norm:''')
OP = 24
for hd, O in enumerate((OA, OB)):
    E(f'v_rcp_f32 v{hd}, v{O + 10}')
for hd, O in enumerate((OA, OB)):
    for j in range(10):
        E(f'v_mul_f32 v{O + j}, v{hd}, v{O + j}')
    for j in range(5):
        d = OP + 4 * hd + j if j < 4 else OP + 8 + hd
        E(f'v_cvt_pk_bf16_f32 v{d}, v{O + 2 * j}, v{O + 2 * j + 1}')
        E(f'v_min_u32 v{d}, -2, v{d}')
    E(f'buffer_store_dwordx4 {v(OP + 4 * hd, 4)}, v{vOA_}, {srd(SWS)}, s{sT0} offen offset:{1024 * hd} sc1')
E(f'buffer_store_dwordx2 {v(OP + 8, 2)}, v{vOB_}, {srd(SWS)}, s{sT0} offen offset:2048 sc1')
E(stamp('o_pub'))

SEL = 60
FA = 68
OF = 192
vOL, vOLR, vRW, vRR = 56, 57, 58, 34
E(f'''v_and_b32 v0, 15, v{vL}
v_lshrrev_b32 v1, 4, v{vL}
v_lshlrev_b32 v{vOL}, 4, v0
v_lshl_add_u32 v{vOL}, v1, 9, v{vOL}
v_mul_u32_u24 v{vOLR}, 2304, v1
v_lshl_add_u32 v{vOLR}, v0, 3, v{vOLR}
v_lshrrev_b32 v2, 2, v0
v_and_b32 v3, 1, v0
v_lshlrev_b32 v3, 4, v3
v_mov_b32 v{SEL + 2}, 0x3f80
v_lshlrev_b32 v3, v3, v{SEL + 2}
v_cmp_eq_u32 vcc, v1, v2
s_nop 1
v_cndmask_b32 v3, 0, v3, vcc
v_and_b32 v2, 2, v0
v_cmp_eq_u32 vcc, 0, v2
v_mov_b32 v{SEL + 2}, 0
v_mov_b32 v{SEL + 3}, 0
v_cndmask_b32 v{SEL}, 0, v3, vcc
v_cndmask_b32 v{SEL + 1}, v3, v{SEL + 2}, vcc
v_mov_b32 v{SEL + 4}, v{SEL}
v_mov_b32 v{SEL + 5}, v{SEL + 1}
s_mul_i32 s{sT0}, s{sW}, 18944
v_mul_u32_u24 v{vRW}, 592, v0
v_lshl_add_u32 v{vRW}, v1, 4, v{vRW}
v_add_u32 v{vRW}, s{sT0}, v{vRW}
s_add_u32 s11, s10, {2 * 2304}''')
oloads = []
for i in range(4):
    for tt in range(2):
        oloads.append(f'buffer_load_dwordx4 {v(OF + 8 * i + 4 * tt, 4)}, v{vOL}, {srd(SWS)}, s{10 + (i >> 1)} offen offset:{(i & 1) * 2304 + tt * 256} sc1')
for tt in range(2):
    oloads.append(f'buffer_load_dwordx2 {v(OF + 32 + 2 * tt, 2)}, v{vOLR}, {srd(SWS)}, s10 offen offset:{2048 + tt * 128} sc1')
misc = [f'v_lshl_or_b32 v0, s{sW}, 6, v{vL}']
for u in range(5):
    misc += [f'v_add_u32 v1, {256 * u}, v0', 'v_mul_u32_u24 v2, 1821, v1', 'v_lshrrev_b32 v2, 16, v2', 'v_add_u32 v2, v2, v1',
             f'v_lshlrev_b32 v{vRR + u}, 4, v2']
cnt = 0
for i in range(4):
    for nu in range(9):
        for tt in range(2):
            acc = FA + 8 * nu + 4 * tt
            E(mf(acc, v(SEL + 2 * (tt ^ (i >> 1)), 4), pfrag(i, nu), i == 0))
            if cnt < len(misc):
                E(misc[cnt])
            if 40 <= cnt < 50:
                E(oloads[cnt - 40])
            cnt += 1
E('s_barrier')
chk = [f'v_max3_u32 v0, v{OF}, v{OF + 1}, v{OF + 2}']
for i in range(3, 35, 2):
    chk.append(f'v_max3_u32 v0, v0, v{OF + i}, v{OF + i + 1}')
chk += [f'v_max_u32 v0, v0, v{OF + 35}', 'v_cmp_eq_u32 vcc, -1, v0']
E(chk)
E(['s_cmp_eq_u64 vcc, 0', 's_cbranch_scc0 L_pc_slow', 'L_pc_ok:'])
side.append(f'''L_pc_slow:
    s_mov_b32 s{sCNT}, 0
L_pc_loop:
    ''' + '\n    '.join(oloads) + '''
    s_waitcnt vmcnt(0)
    ''' + '\n    '.join(chk) + f'''
    s_add_u32 s{sCNT}, s{sCNT}, 1
    s_nop 4
    s_cmp_eq_u64 vcc, 0
    s_cbranch_scc1 L_pc_ok
    s_cmp_lt_u32 s{sCNT}, 0x4000
    s_cbranch_scc1 L_pc_loop
    s_branch L_pc_ok
''')
E(stamp('o_got'))


def red_write(nu, tt):
    return f'ds_write_b128 v{vRW}, {v(FA + 8 * nu + 4 * tt, 4)} offset:{tt * 16 * 592 + nu * 64}'


def rem_mf(k):
    nu, tt = k >> 1, k & 1
    acc = FA + 4 * k
    return f'v_mfma_f32_16x16x16_bf16 {v(acc, 4)}, {a(144 + 2 * nu, 2)}, {v(OF + 32 + 2 * tt, 2)}, {v(acc, 4)}'


pend = []
E([rem_mf(k) for k in range(7)])
for nu in range(9):
    for tt in range(2):
        acc = FA + 8 * nu + 4 * tt
        for i in range(4):
            E(mf(acc, a(4 * (4 * nu + i), 4), v(OF + 8 * i + 4 * tt, 4), False))
        if 2 * nu + tt + 7 < 18:
            E(rem_mf(2 * nu + tt + 7))
        pend.append((nu, tt))
        if len(pend) > 2:
            E(red_write(*pend.pop(0)))
for x in pend:
    E(red_write(*x))
E(barrier())
RD = 140
for u in range(5):
    for src in range(4):
        E(f'ds_read_b128 {v(RD + 16 * u + 4 * src, 4)}, v{vRR + u} offset:{src * 18944}')
for u in range(5):
    R = RD + 16 * u
    E([f'v_lshlrev_b32 v0, 16, v{XR + 2 * u}', f'v_and_b32 v1, 0xffff0000, v{XR + 2 * u}',
       f'v_lshlrev_b32 v2, 16, v{XR + 2 * u + 1}', f'v_and_b32 v3, 0xffff0000, v{XR + 2 * u + 1}'])
    for src in range(4):
        E([f'v_pk_add_f32 v[0:1], v[0:1], {v(R + 4 * src, 2)}', f'v_pk_add_f32 v[2:3], v[2:3], {v(R + 4 * src + 2, 2)}'])
    E([f'v_cvt_pk_bf16_f32 v{R}, v0, v1', f'v_cvt_pk_bf16_f32 v{R + 1}, v2, v3',
       f'buffer_store_dwordx2 {v(R, 2)}, v{vOUT + u}, {srd(SA)}, s6 offen'])
if OPT['stamp']:
    E('s_waitcnt vmcnt(0)')
    E(stamp('end'))
    E(f'''s_lshl_b32 s{sT0}, s{sM}, 4
s_add_u32 s{sT0}, s{sT0}, s{sS}
s_lshl_b32 s{sT0}, s{sT0}, 2
s_add_u32 s{sT0}, s{sT0}, s{sW}
s_lshl_b32 s{sT0}, s{sT0}, 8
s_add_u32 s{sT0}, s{sT0}, {WS_STAMP2}
v_lshlrev_b32 v0, 2, v{vL}
buffer_store_dword v{vSTAMP}, v0, {srd(SWS)}, s{sT0} offen''')
E('s_endpgm')
main = p.finalize()

q = Prog()
F = q.e
fK, fR, fV, fD = 58, 59, 60, 64
back = (L_KV0 - 13 * REC) & 0xffffffff


def fb_addr():
    out = [f'v_add_u32 v{fK}, {back}, v{vKB}', f'v_add_u32 v{fR}, {back}, v{vKRB}',
           f'v_add_u32 v2, v{vDL}, v{vDL + 1}']
    out += [f'v_sub_u32 v{fV + f}, v{vVB + f}, v2' for f in range(4)]
    out += [f's_mov_b32 s{sCNT}, 0']
    return out


def fb_next(label):
    return [f's_add_u32 s{sCNT}, s{sCNT}, 1', f's_cmp_eq_u32 s{sCNT}, 10',
            f's_mov_b32 s12, {REC}', f's_cmov_b32 s12, {(-(L_KV0 + 9 * REC)) & 0xffffffff}',
            f'v_add_u32 v{fK}, s12, v{fK}', f'v_add_u32 v{fR}, s12, v{fR}',
            f'v_mul_lo_u32 v2, v{fD}, s12'] + [f'v_add_u32 v{fV + f}, v2, v{fV + f}' for f in range(4)] + \
           [f's_cmp_lt_u32 s{sCNT}, 32', 's_nop 15', f's_cbranch_scc1 {label}']


def fb_qk(tile):
    return [f'ds_read_b128 {v(KM, 4)}, v{fK} offset:{1024 * tile}', f'ds_read_b128 {v(KRM, 4)}, v{fR}',
            f'v_mfma_f32_32x32x4_2b_bf16 {v(S0, 32)}, {v(KRM + 2 * tile, 2)}, {v(QR, 2)}, 0',
            f'v_mfma_f32_32x32x16_bf16 {v(S0, 16)}, {v(KM, 4)}, {v(QA, 4)}, {v(S0, 16)}',
            f'v_mfma_f32_32x32x16_bf16 {v(S0 + 16, 16)}, {v(KM, 4)}, {v(QB, 4)}, {v(S0 + 16, 16)}']


F('L_fb:')
F(['s_nop 15', f'v_min_u32 v{fD}, 1, v{vDL + 1}', f'v_mov_b32 v{QR + 1}, 0', 'v_mov_b32 v0, 0xff800000', 'v_mov_b32 v1, 0xff800000'])
F(fb_addr())
F('L_fb1:')
for tile in range(2):
    F(fb_qk(tile))
    for hd in range(2):
        for i in range(0, 16, 2):
            F(f'v_max3_f32 v{hd}, v{hd}, v{S0 + 16 * hd + i}, v{S0 + 16 * hd + i + 1}')
F(fb_next('L_fb1'))
F(set_m(0, 1, 0.0))
F([f'v_mov_b32 v{OA + i}, 0' for i in range(32)])
F(fb_addr())
F('L_fb2:')
for tile in range(2):
    F(fb_qk(tile))
    F([f'ds_read_b128 {v(VF + 4 * i, 4)}, v{fV + 2 * tile + i}' for i in range(2)])
    F([f'v_exp_f32 v{S0 + i}, v{S0 + i}' for i in range(32)])
    for hd in range(2):
        for i in range(2):
            F(f'v_smfmac_f32_32x32x32_bf16 {v(OB if hd else OA, 16)}, {v(VF + 4 * i, 4)}, {v(S0 + 16 * hd + 8 * i, 8)}, v{vIDX}')
F(fb_next('L_fb2'))
F(['s_nop 15', 's_branch L_norm'])
fb = q.finalize(False)

hdr = open('cdna_kernels/' + NAME + '.s.ref').read().split('; Override launch')[0]
text = hdr + f'''; Generated by dev/gen.py: one persistent workgroup per CU (128 tokens x 1/16 of the FFN width x 2 heads).
; @launch grid=(256,1,1) block=(256,1,1) lds=163840
.amdgcn_target "amdgcn-amd-amdhsa--gfx950"
.text
.globl {NAME}_kernel
.p2align 8
.type {NAME}_kernel,@function
{NAME}_kernel:
{main}
{''.join(side)}
{fb}
L_end:
    s_endpgm
.section .rodata,"a"
.p2align 6
.amdhsa_kernel {NAME}_kernel
  .amdhsa_next_free_vgpr 512
  .amdhsa_next_free_sgpr 102
  .amdhsa_accum_offset 256
  .amdhsa_group_segment_fixed_size 0
  .amdhsa_kernarg_size 96
  .amdhsa_user_sgpr_count 2
  .amdhsa_user_sgpr_kernarg_segment_ptr 1
  .amdhsa_system_sgpr_workgroup_id_x 1
.end_amdhsa_kernel
'''
open(sys.argv[1], 'w').write(text)
open(sys.argv[1] + '.stamps', 'w').write(' '.join(STAMPS))
print('bytes of source', len(text))
```

```python
import sys, struct, math
from asmlib import Prog, Ins, cost

NAME = 'parallel_sum__grouped_kv_mqa__geglu_ffn__prompt'
OPT = dict(stamp=0, touch=7, force_fb=0, shift=80.0)
for a in sys.argv[2:]:
    k, v = a.split('=', 1)
    OPT[k] = v if k in ('drop', 'sub') else float(v) if '.' in v else int(v)


ROT = OPT.get('rot', 0)


def f2u(x):
    return '0x%08x' % struct.unpack('<I', struct.pack('<f', x))[0]


WS_KV = 0
WS_FLAG = 0x30000
WS_STAMP = 0x38000
WS_WOT = 0x40000
WS_O = 0x100000
WS_WQT = 0x340000
WS_P = 0x440000
WS_STAMP2 = 0x3000000
WS_SIZE = 0x10000000
OOB = 0x40000000
REC = 4992

L_SS = 49152
L_QIMG = 98304
L_KVS = 147456
L_STASH = 153600
L_STATS = 162816
L_DSLOT = 36864
L_KV0 = 110592
L_OOR = 0x28000

SX, SW, SD, SWS, SA, SB = 28, 32, 36, 40, 44, 48
sM, sS, sW, sI1, sT0, sT1, sT2, sT3, sMB, sCNT = 52, 53, 54, 55, 56, 57, 58, 59, 60, 61
sMKV = 62
sJQ, sJO = 16, 17
TAB = 64
sQM = 4
sMK4, sMK5 = 100, 20


def srd(r):
    return f's[{r}:{r + 3}]'


vT0, vT1, vT2, vT3 = 0, 1, 2, 3
vDMA, vRB0, vRB1, vTCH = 4, 5, 6, 7
K0, K1, KR = 8, 12, 16
vDUM, vDMA2, vL, vSTAMP = 20, 21, 22, 23
WF = 24
XV = 48
H = 80
ACC0, ACC1 = 128, 192
XLG = [120, 156, 192, 80]
PRE = 228


def v(r, n=1):
    return f'v{r}' if n == 1 else f'v[{r}:{r + n - 1}]'


def a(r, n=1):
    return f'a{r}' if n == 1 else f'a[{r}:{r + n - 1}]'


def xfrag(kap, u):
    i = 4 * kap + u
    return a(4 * i, 4) if i < 64 else v(XV + 4 * (i - 64), 4)


p = Prog()
P = Prog.P
E = p.e
_stamp = [0]
STAMPS = []


def T(text, tag=None, opt=False):
    return Ins(text, tag, opt)


def stamp(name):
    if not OPT['stamp']:
        return []
    i = _stamp[0]
    _stamp[0] += 1
    STAMPS.append(name)
    return ['s_memtime s[2:3]', 's_waitcnt lgkmcnt(0)', f'v_writelane_b32 v{vSTAMP}, s2, {i}',
            's_memrealtime s[2:3]', 's_waitcnt lgkmcnt(0)', f'v_writelane_b32 v{vSTAMP}, s2, {32 + i}']


def mk_srd(r, ptr, size):
    return [f's_mov_b32 s{r}, s{ptr}', f's_mov_b32 s{r + 1}, s{ptr + 1}', f's_mov_b32 s{r + 2}, {size}',
            f's_mov_b32 s{r + 3}, 0x20000']


def barrier(vtags=(), lds=True):
    return [P('waittag', (set(vtags), lds)), 's_barrier']


E(f'''
s_cmp_ge_u32 s2, 256
s_cbranch_scc1 L_end
s_load_dwordx16 s[4:19], s[0:1], 0
s_load_dwordx8 s[20:27], s[0:1], 64
v_lshrrev_b32 v1, 6, v0
v_and_b32 v{vL}, 63, v0
s_getpc_b64 s[{sT0}:{sT1}]
L_pc:
v_readfirstlane_b32 s{sW}, v1
s_lshr_b32 s{sT2}, s2, 3
''')
E(f'''
v_lshrrev_b32 v2, 3, v0
s_lshl_b32 s{sT3}, s{sT2}, 5
v_add_u32 v2, s{sT3}, v2
v_min_u32 v2, (L_end-L_pc)/128, v2
v_lshlrev_b32 v2, 7, v2
global_load_dword v{vDUM}, v2, s[{sT0}:{sT1}]
''')
if OPT.get('stlb', 0):
    E([f's_load_dword s{TAB + i}, s[{sT0}:{sT1}], {4096 * (i + 1)}' for i in range(16)])
E(f'''
s_and_b32 s{sM}, s2, 1
s_lshl_b32 s{sM}, s{sM}, 3
s_and_b32 s{sT3}, s{sT2}, 7
s_add_u32 s{sM}, s{sM}, s{sT3}
s_bfe_u32 s{sS}, s2, 0x20001
s_lshl_b32 s{sS}, s{sS}, 2
s_lshr_b32 s{sT2}, s{sT2}, 3
s_add_u32 s{sS}, s{sS}, s{sT2}
s_mov_b32 s{sCNT}, s2
s_and_b32 s{sI1}, s{sS}, {ROT}
s_lshr_b32 s{sI1}, s{sI1}, 1
s_lshl_b32 s{sMB}, s{sM}, 2
s_add_u32 s{sMB}, s{sMB}, s{sW}
v_lshrrev_b32 v1, 3, v{vL}
v_and_b32 v3, 7, v{vL}
v_mul_u32_u24 v0, 1152, v1
v_lshl_add_u32 v0, v3, 4, v0
''')
if OPT['stamp']:
    E(f'v_mov_b32 v{vSTAMP}, 0')
E(mk_srd(SX, 4, 2359296))
E(stamp('start'))
XSO = [14, 15, 0, 1]
vXL = vDMA2
E(f'''
v_mov_b32 v{vXL}, v0
s_and_b32 s{sT2}, s{sS}, {ROT}
s_lshl_b32 s{sT1}, s{sMB}, 2
''')
for g in range(4):
    E(f'''
s_xor_b32 s{sT0}, s{sT2}, {g}
s_add_u32 s{sT0}, s{sT0}, s{sT1}
s_mul_i32 s{XSO[g]}, s{sT0}, 9216
''')
    if g == 0:
        xl = [f'buffer_load_dwordx4 {v(XLG[g_] + 4 * c, 4)}, v{vXL}, {srd(SX)}, s{XSO[g_]} offen offset:{128 * c}'
              for g_ in range(4) for c in range(9)]
        E(xl[:4])
NX0 = OPT.get('nx0', 18)
pre_at = len(p.ins)
E(f'''
s_cmp_ge_u32 s{sW}, 2
s_cselect_b32 s{SW}, s18, s16
s_cselect_b32 s{SW + 1}, s19, s17
s_mov_b32 s{SW + 2}, 5308416
s_mov_b32 s{SW + 3}, 0x20000
''')
E(mk_srd(SD, 20, 5308416))
E(mk_srd(SWS, 26, WS_SIZE))
E(mk_srd(SA, 12, 663552))
E(mk_srd(SB, 24, 256))
for st in range(9):
    for j in range(4):
        E(f's_mov_b32 s{TAB + 4 * st + j}, {(64 * st + 16 * j) * 9216 - 1024 * j}')
E(f'''
s_and_b32 s{sT0}, s{sW}, 1
s_mul_i32 s{sT1}, s{sS}, 576
s_and_b32 s{sT2}, s{sS}, 1
s_lshl_b32 s{sT3}, s{sT2}, 6
s_add_u32 s{sT3}, s{sT3}, s{sT1}
v_bfe_u32 v2, v{vL}, 4, 1
v_lshl_or_b32 v2, s{sT0}, 1, v2
v_lshlrev_b32 v2, 1, v2
v_xor_b32 v2, v2, v3
v_lshlrev_b32 v2, 4, v2
v_lshl_add_u32 v{vDMA}, s{sT0}, 3, v1
v_mul_u32_u24 v{vDMA}, 9216, v{vDMA}
v_add3_u32 v{vDMA}, v{vDMA}, v2, s{sT3}
''')
sTB, sTW = 13, 3
E(f'''
s_and_b32 s{sT1}, s{sM}, 7
s_lshl_b32 s{sT2}, s{sT1}, 1
s_add_u32 s{sT2}, s{sT2}, s{sT0}
s_mul_i32 s{sT2}, s{sT2}, {12 * 9216}
s_add_u32 s{sTB}, s{sT2}, s{sT3}
v_min_u32 v{vTCH}, 11, v{vL}
v_mul_u32_u24 v{vTCH}, 9216, v{vTCH}
''')


def touch_w(n):
    if not OPT['touch'] & (1 if n < 3 else 4):
        return []
    return [[f's_add_u32 s5, s{sTB}, {(n % 3) * 192 * 9216}'],
            [f'buffer_load_dword v{vDUM}, v{vTCH}, {srd(SW)}, s5 offen offset:{128 * (n // 3)}']]


sWL = 19
E(f's_lshl_b32 s{sWL}, s{sW}, 12')


def dma_full(n, rnd_stage0, tag):
    out = []
    base = ((n + 2) % 3) * L_SS
    for q in range(3):
        st = rnd_stage0 + q
        out.append([f's_add_u32 m0, s{sWL}, {base + q * 16384}'])
        for j in range(4):
            out.append([T(f'buffer_load_dwordx4 v{vDMA}, {srd(SW)}, s{TAB + 4 * st + j} offen offset:{1024 * j} lds', tag)])
    return out


def flat(L):
    return [x for y in L for x in y]


vXW0, vXW1, vXR = PRE, PRE + 1, 116
E(f'''
s_mul_i32 s{sT0}, s{sW}, 18432
s_add_u32 s{sT0}, s{sT0}, 24576
s_and_b32 s{sT1}, s{sS}, {ROT & 1}
v_xor_b32 v0, v1, v3
v_lshl_or_b32 v0, s{sT1}, 3, v0
v_lshlrev_b32 v0, 4, v0
v_lshl_add_u32 v0, v3, 8, v0
v_add_u32 v{vXW0}, s{sT0}, v0
v_xor_b32 v{vXW1}, 128, v{vXW0}
v_lshrrev_b32 v2, 4, v{vL}
v_xor_b32 v0, v2, v{vL}
v_lshlrev_b32 v0, 4, v0
v_add_u32 v{vXR}, s{sT0}, v0
v_xor_b32 v{vXR + 1}, 64, v{vXR}
s_xor_b32 s{sT1}, s{sW}, 1
s_mul_i32 s{sT1}, s{sT1}, 18432
s_add_u32 s{sT1}, s{sT1}, 24576
v_add_u32 v{vXR + 2}, s{sT1}, v0
v_xor_b32 v{vXR + 3}, 64, v{vXR + 2}
''')
vSW0, vSW1 = PRE + 8, PRE + 9
E(f'''
s_and_b32 s{sT1}, s{sS}, {ROT & 1}
s_lshl_b32 s{sT0}, s{sW}, 7
s_add_u32 s{sT0}, s{sT0}, {L_STATS}
v_lshl_or_b32 v0, s{sT1}, 3, v1
v_lshl_add_u32 v{vSW0}, v0, 2, s{sT0}
v_xor_b32 v{vSW1}, 32, v{vSW0}
''')
E(f'''
s_and_b32 s{sT0}, s{sW}, 1
v_bfe_u32 v0, v{vL}, 4, 1
v_bfe_u32 v2, v{vL}, 3, 2
v_lshlrev_b32 v{WF}, 1, s{sT0}
v_xor_b32 v2, v2, v{WF}
v_lshlrev_b32 v2, 5, v2
v_lshl_add_u32 v2, v0, 12, v2
v_lshrrev_b32 v0, 5, v{vL}
v_lshl_add_u32 v2, v0, 10, v2
v_bfe_u32 v0, v{vL}, 2, 2
v_lshl_add_u32 v2, v0, 7, v2
v_and_b32 v0, 3, v{vL}
v_lshl_add_u32 v2, v0, 3, v2
v_add_u32 v{vRB0}, {2 * L_SS}, v2
v_xor_b32 v{vRB1}, 32, v{vRB0}
''')
C0 = -2.0 * math.log2(math.e) * math.sqrt(2.0 / math.pi)
QS = 18 ** -0.5 * math.log2(math.e)
vGA, vGS = PRE + 4, PRE + 6
r16, g16 = XV, XV + 1
E(f'''
v_and_b32 v{r16}, 15, v{vL}
v_lshrrev_b32 v{g16}, 4, v{vL}
s_lshr_b32 s18, s{sCNT}, 3
s_lshl_b32 s18, s18, 2
s_add_u32 s18, s18, s{sW}
s_and_b32 s{sCNT}, s{sCNT}, 7
s_min_u32 s{sT0}, s18, 107
s_mul_i32 s{sT1}, s{sCNT}, 108
s_add_u32 s{sT0}, s{sT0}, s{sT1}
s_mul_i32 s{sT2}, s{sT0}, 1366
s_lshr_b32 s{sT2}, s{sT2}, 16
s_mul_i32 s{sT1}, s{sT2}, 48
s_sub_u32 s{sT0}, s{sT0}, s{sT1}
s_mul_i32 s{sT1}, s{sT0}, 86
s_lshr_b32 s{sT1}, s{sT1}, 8
s_mul_i32 s{sT3}, s{sT1}, 3
s_sub_u32 s{sT0}, s{sT0}, s{sT3}
s_mul_i32 s{sJQ}, s{sT1}, 18
s_add_u32 s{sJQ}, s{sJQ}, s{sT2}
s_mul_i32 s{sJQ}, s{sJQ}, 3
s_add_u32 s{sJQ}, s{sJQ}, s{sT0}
s_lshl_b32 s{sJQ}, s{sJQ}, 10
s_add_u32 s{sJQ}, s{sJQ}, {WS_WQT}
s_cmp_lt_u32 s18, 108
s_cselect_b32 s{sJQ}, s{sJQ}, {OOB}
s_lshl_b32 s{sT2}, s{sT2}, 5
v_lshrrev_b32 v0, 1, v{vL}
v_add_u32 v0, s{sT2}, v0
s_lshr_b32 s{sT2}, 0x2c, s{sT1}
s_and_b32 s{sT2}, s{sT2}, 1
s_cselect_b32 s8, s10, s8
s_cselect_b32 s9, s11, s9
s_and_b32 s{sT2}, s{sT1}, 1
s_lshl_b32 s{sT2}, s{sT2}, 4
s_cmp_ge_u32 s{sT1}, 4
s_cselect_b32 s{sT2}, 20, s{sT2}
s_mul_i32 s{sT1}, s{sT1}, 72
s_mul_i32 s{sT3}, s{sT0}, 40
s_cmp_eq_u32 s{sT0}, 2
s_cselect_b32 s{sT3}, 32, s{sT3}
s_cselect_b32 s11, 0, 1
s_add_u32 s{sT1}, s{sT1}, s{sT3}
v_and_b32 v{WF + 6}, 1, v{vL}
v_lshl_add_u32 v2, v{WF + 6}, 4, s{sT1}
v_cmp_lt_u32 vcc, s11, v{WF + 6}
v_mov_b32 v{WF}, s{sT2}
v_mov_b32 v{WF + 1}, 1152
v_mov_b32 v{WF + 2}, s6
v_mov_b32 v{WF + 3}, s7
v_mov_b32 v{WF + 4}, s8
v_mov_b32 v{WF + 5}, s9
v_cndmask_b32 v2, v2, v{WF}, vcc
v_cndmask_b32 v{WF + 1}, v{WF + 1}, 36, vcc
v_cndmask_b32 v{vGA}, v{WF + 2}, v{WF + 4}, vcc
v_cndmask_b32 v{vGA + 1}, v{WF + 3}, v{WF + 5}, vcc
v_mad_u32_u24 v{WF}, v0, v{WF + 1}, v2
v_mov_b32 v{WF + 1}, 0
v_lshl_add_u64 {v(vGA, 2)}, {v(WF, 2)}, 0, {v(vGA, 2)}
''')
vGW = PRE + 3
E(f'''
s_sub_u32 s12, 127, s18
s_min_u32 s18, s12, 81
s_cmp_ge_u32 s18, 36
s_cselect_b32 s{sT0}, 1, 0
s_cselect_b32 s{sT1}, 36, 0
s_sub_u32 s{sT1}, s18, s{sT1}
s_lshl_b32 s{sT2}, s{sCNT}, 1
s_add_u32 s{sT0}, s{sT0}, s{sT2}
s_mul_i32 s4, s{sT0}, {36 * 1152}
s_lshl_b32 s{sT2}, s{sT1}, 5
s_add_u32 s4, s4, s{sT2}
s_mul_i32 s{sT2}, s{sT1}, 57
s_lshr_b32 s{sT2}, s{sT2}, 9
s_mul_i32 s{sT2}, s{sT2}, 128
s_lshl_b32 s{sT1}, s{sT1}, 2
s_add_u32 s{sT1}, s{sT1}, s{sT2}
s_and_b32 s{sT0}, s{sT0}, 3
s_add_u32 s{sJO}, s{sT1}, s{sT0}
s_and_b32 s{sT0}, s{sCNT}, 1
s_mul_i32 s{sT0}, s{sT0}, 10
s_add_u32 s{sT0}, s{sT0}, s18
s_sub_u32 s{sT0}, s{sT0}, 72
s_mul_i32 s{sT1}, s{sT0}, 52
s_lshr_b32 s{sT1}, s{sT1}, 8
s_mul_i32 s{sT2}, s{sT1}, 159
s_add_u32 s{sT2}, s{sT2}, s{sT0}
s_add_u32 s{sT2}, s{sT2}, 36
s_lshl_b32 s{sT0}, s{sT0}, 6
s_lshl_b32 s{sT1}, s{sT1}, 5
s_sub_u32 s{sT0}, s{sT0}, s{sT1}
s_lshr_b32 s{sT3}, s{sCNT}, 1
s_mul_i32 s{sT1}, s{sT3}, {144 * 1152}
s_add_u32 s{sT0}, s{sT0}, s{sT1}
s_add_u32 s{sT0}, s{sT0}, {16 * 1152}
s_mov_b32 s10, {72 * 1152}
s_mov_b32 s11, {36 * 1152}
s_mov_b32 s5, {18 * 1152}
s_cmp_lt_u32 s18, 72
s_cselect_b32 s4, s4, s{sT0}
s_cselect_b32 s{sJO}, s{sJO}, s{sT2}
s_cmov_b32 s10, {18 * 1152}
s_cmov_b32 s11, {4 * 1152}
s_cmov_b32 s5, {2 * 1152}
s_cselect_b32 s6, {8 * 1152}, 32
s_mul_i32 s{sT3}, s{sT3}, 41
s_add_u32 s{sJO}, s{sJO}, s{sT3}
s_lshl_b32 s{sJO}, s{sJO}, 10
s_add_u32 s{sJO}, s{sJO}, {WS_WOT}
s_cmp_lt_u32 s12, 82
s_cselect_b32 s{sJO}, s{sJO}, {OOB}
v_lshl_add_u32 v0, v{WF + 6}, 4, s4
v_lshrrev_b32 v2, 5, v{vL}
v_mad_u32_u24 v0, v2, s10, v0
v_bfe_u32 v2, v{vL}, 4, 1
v_mad_u32_u24 v0, v2, s11, v0
v_bfe_u32 v2, v{vL}, 3, 1
v_mad_u32_u24 v0, v2, s6, v0
v_bfe_u32 v2, v{vL}, 2, 1
v_mad_u32_u24 v0, v2, s5, v0
v_bfe_u32 v2, v{vL}, 1, 1
v_mul_u32_u24 v2, 1152, v2
v_add_u32 v{vGW}, v0, v2
s_mul_i32 s{sT0}, s{sW}, 2304
s_add_u32 s8, s{sT0}, {L_STASH}
s_lshl_b32 s18, s12, 2
s_lshl_b32 s12, s{sW}, 10
s_add_u32 s12, s12, {L_KVS}
v_lshlrev_b32 v0, 3, v{r16}
v_lshl_add_u32 v0, v{g16}, 8, v0
v_add_u32 v{vGS}, s12, v0
v_add_u32 v{vGS + 1}, s8, v0
''')


def sel_setup(SEL, r, g):
    return f"""v_lshrrev_b32 v2, 2, v{r}
v_and_b32 v3, 1, v{r}
v_cmp_eq_u32 s[10:11], v{g}, v2
v_lshlrev_b32 v3, 4, v3
v_mov_b32 v{SEL + 2}, 0x3f80
v_lshlrev_b32 v3, v3, v{SEL + 2}
v_and_b32 v2, 2, v{r}
v_cmp_eq_u32 vcc, 0, v2
v_cndmask_b32 v3, 0, v3, s[10:11]
v_mov_b32 v{SEL + 2}, 0
v_mov_b32 v{SEL + 3}, 0
v_cndmask_b32 v{SEL}, 0, v3, vcc
v_cndmask_b32 v{SEL + 1}, v3, v{SEL + 2}, vcc
v_mov_b32 v{SEL + 4}, v{SEL}
v_mov_b32 v{SEL + 5}, v{SEL + 1}""".split('\n')


LSEL, LONE = 8, 14
E(sel_setup(LSEL, r16, g16))
E('v_mov_b32 v2, 0x3f803f80')
E([f'v_cndmask_b32 v{LONE + i}, 0, v2, s[10:11]' for i in range(4)])
body = p.ins[pre_at:]
del p.ins[pre_at:]
k = 4
for i, x in enumerate(body):
    E(x)
    while k < NX0 and (k - 4) * len(body) < (i + 1) * (NX0 - 4):
        E(xl[k])
        k += 1


def red8(r):
    return [f'v_add_f32_dpp v{r}, v{r}, v{r} quad_perm:[1,0,3,2] row_mask:0xf bank_mask:0xf',
            f'v_add_f32_dpp v{r}, v{r}, v{r} quad_perm:[2,3,0,1] row_mask:0xf bank_mask:0xf',
            f'v_add_f32_dpp v{r}, v{r}, v{r} row_half_mirror row_mask:0xf bank_mask:0xf']


LS, LN_, LT = WF, WF + 4, WF + 8
vDLT = [18, 19, PRE + 10, PRE + 11]


def mf(acc, A, B, first):
    return f'v_mfma_f32_16x16x32_bf16 {v(acc, 4)}, {A}, {B}, {0 if first else v(acc, 4)}'


def ln_sum(g):
    return [mf(LS, v(LONE, 4), v(XLG[g] + 4 * c, 4), c == 0) for c in range(9)]


def ln_mean(g):
    return red8(LS) + [f'v_mul_f32 v0, {f2u(-1 / 576)}, v{LS}', f'v_cvt_pk_bf16_f32 v1, v0, v0'] + \
        [f'v_and_b32 v{LN_ + i}, 0xffff0000, v1' for i in range(4)] + [f'v_sub_f32 v{vDLT[g]}, v0, v{LN_}']


def ln_sq(g, c, acc):
    X = XLG[g] + 4 * c
    return [f'v_dot2c_f32_bf16 v{acc}, v{X + d}, v{X + d}' for d in range(4)]


def ln_den(g, acc):
    t = vDLT[g]
    return red8(acc) + f"""v_mul_f32 v{t}, v{t}, v{t}
v_mul_f32 v{acc}, {f2u(1 / 576)}, v{acc}
v_sub_f32 v{acc}, v{acc}, v{t}
v_max_f32 v{acc}, 0, v{acc}
v_cvt_pk_bf16_f32 v{acc}, v{acc}, v{acc}
v_and_b32 v{acc}, 0xffff0000, v{acc}
v_add_f32 v{acc}, {f2u(1e-5)}, v{acc}
v_cvt_pk_bf16_f32 v{acc}, v{acc}, v{acc}
v_and_b32 v{acc}, 0xffff0000, v{acc}
v_sqrt_f32 v{acc}, v{acc}
v_cvt_pk_bf16_f32 v{acc}, v{acc}, v{acc}
v_and_b32 v{acc}, 0xffff0000, v{acc}
ds_write_b32 v{vSW1 if g & 1 else vSW0}, v{acc} offset:{64 * (g >> 1)}""".split('\n')


def merge(A, B):
    out = []
    k = 0
    for i, x in enumerate(A):
        out.append(x)
        while k < len(B) and k * len(A) < (i + 1) * len(B):
            out.append(B[k])
            k += 1
    return out + B[k:]


def ln_centre(g, hold):
    X = XLG[g]
    wr = vXW1 if g & 1 else vXW0
    cm = lambda c: [f'v_mfma_f32_16x16x32_bf16 {v(LT + 8 * (c & 1) + 4 * h_, 4)}, {v(LSEL + 2 * h_, 4)}, {v(X + 4 * c, 4)}, {v(LN_, 4)}'
                    for h_ in range(2)]
    wrt = lambda c: f'ds_write_b128 v{wr}, {v(X + 4 * c, 4)} offset:{2048 * c}'
    L = cm(0)
    for c in range(9):
        n_ = cm(c + 1) if c < 8 else []
        tt = LT + 8 * (c & 1)
        L += n_[:1]
        if c > 0:
            if c - 1 > hold:
                L.append(wrt(c - 1))
            elif c - 1 == hold:
                L.append(barrier())
                L += [wrt(z) for z in range(c)]
        L += n_[1:]
        L += [f'v_cvt_pk_bf16_f32 v{X + 4 * c + d}, v{tt + 2 * d}, v{tt + 2 * d + 1}' for d in range(4)]
    L.append(wrt(8))
    return L


def readback(u0):
    out = []
    for kap in range(18):
        for who in range(2):
            out.append(T(f'ds_read_b128 {xfrag(kap, u0 + 2 * who)}, v{vXR + 2 * who + (kap & 1)} offset:{1024 * kap}', 'xrb'))
    return out


E(stamp('pre_done'))
NX1 = OPT.get('nx1', 30)
ND0, ND1 = OPT.get('nd0', 0), OPT.get('nd1', 15)
d0 = dma_full(0, 0, 'n0') + dma_full(1, 3, 'n1')[:5]
gl = [['s_mov_b32 m0, s12'], [T(f'global_load_lds_dwordx4 {v(vGA, 2)}, off', 'gth')],
      ['s_mov_b32 m0, s8'], [T(f'buffer_load_dwordx4 v{vGW}, {srd(SA)}, 0 offen lds', 'gth')]]
rb0 = readback(0)


def sq_all(g, acc):
    return [f'v_mov_b32 v{acc}, 0'] + flat([ln_sq(g, c, acc) for c in range(9)])


st3 = lambda n_: stamp(n_) if OPT['stamp'] == 3 else []
E(merge(ln_sum(0) + ln_mean(0) + st3('m0') + ln_centre(0, -1) + st3('c0') + sq_all(0, 3) + st3('q0') + merge(ln_den(0, 3), ln_sum(1)), touch_w(0) + xl[NX0:NX1]))
E(merge(ln_mean(1) + st3('m1') + ln_centre(1, -1) + st3('c1') + sq_all(1, 3)[:12], xl[NX1:] + touch_w(1) + d0[:ND0]))
E(barrier())
E(st3('b1'))
E(merge(sq_all(1, 3)[12:] + merge(ln_den(1, 3), ln_sum(2)) + ln_mean(2), rb0))
E(st3('m2'))
E(merge(ln_centre(2, 0) + st3('c2') + sq_all(2, 3) + merge(ln_den(2, 3), ln_sum(3)), touch_w(2) + d0[ND0:ND1]))
E(merge(ln_mean(3) + st3('m3') + ln_centre(3, -1), d0[ND1:] + gl))
E(stamp('ln_done'))
sq3 = sq_all(3, 3)
E(sq3[:12])
E(barrier(['n0']))

groups = []


def wf(k, i):
    return WF + 8 * (k % 3) + 4 * i


def trr(k, i, rd, base, off):
    r = wf(k, i) + 2 * rd
    assert 0 <= off < 65536, off
    return f'ds_read_b64_tr_b16 {v(r, 2)}, v{base} offset:{off}'


mark = {}
cur_slot = [2]


def add_full_round(rho, n0):
    acc = ACC0 if rho % 2 == 0 else ACC1
    mark[f'R{rho}'] = len(groups)
    for st in range(9):
        n = n0 + st // 3
        for tile in range(4):
            k = len(groups)
            c, mat = tile >> 1, tile & 1
            rd = []
            if st % 3 == 0 and mat == 0:
                sl = (n + 2) % 3
                if sl != cur_slot[0]:
                    rd.append(f'v_add_u32 v{vRB0 + c}, {((sl - cur_slot[0]) * L_SS) & 0xffffffff}, v{vRB0 + c}')
                if c == 1:
                    cur_slot[0] = sl
            for i in range(2):
                for r in range(2):
                    rd.append(trr(k, i, r, vRB0 + c, (st % 3) * 16384 + mat * 8192 + i * 2048 + r * 512))
            m = [mf(acc + 16 * tile + 4 * u, v(wf(k, i), 4), xfrag(2 * st + i, u), st == 0 and i == 0)
                 for u in range(4) for i in range(2)]
            groups.append(dict(m=m, r=rd, ep=f'n{n}'))


QACC = ACC0 + 32


def add_q():
    mark['Q'] = len(groups)
    for blk in range(9):
        for tile in range(3):
            k = len(groups)
            rd = []
            if blk == 0 and tile == 0:
                rd += [f'v_lshlrev_b32 v{vRB1}, 4, v{vL}', f'v_add_u32 v{vRB1}, {L_QIMG}, v{vRB1}']
            for i in range(2):
                rd.append(f'ds_read_b128 {v(wf(k, i), 4)}, v{vRB1} offset:{((2 * blk + i) * 3 + tile) * 1024}')
            m = [mf(QACC + 8 * tile + 4 * u, v(wf(k, i), 4), xfrag(2 * blk + i, u), blk == 0 and i == 0)
                 for u in range(2) for i in range(2)]
            groups.append(dict(m=m, r=rd, ep='n12'))


def add_half():
    mark['RH'] = len(groups)
    for st in range(9):
        for mat in range(2):
            k = len(groups)
            rd = []
            if st == 0 and mat == 0:
                rd += [f'v_lshrrev_b32 v{vRB0}, 4, v{vL}', f'v_bfe_u32 v{vT2}, v{vL}, 2, 2',
                       f'v_lshl_add_u32 v{vT2}, v{vRB0}, 3, v{vT2}', f'v_xor_b32 v{vRB0}, s{sW}, v{vRB0}',
                       f'v_and_b32 v{vRB0}, 1, v{vRB0}', f'v_lshlrev_b32 v{vRB0}, 5, v{vRB0}',
                       f'v_lshl_add_u32 v{vRB0}, v{vT2}, 6, v{vRB0}', f'v_and_b32 v{vT2}, 3, v{vL}',
                       f'v_lshl_add_u32 v{vRB0}, v{vT2}, 3, v{vRB0}']
            if st == 6 and mat == 0:
                rd.append(f'v_add_u32 v{vRB0}, 49152, v{vRB0}')
            part = st // 3
            for i in range(2):
                for r in range(2):
                    rd.append(trr(k, i, r, vRB0, (part % 2) * 24576 + mat * 12288 + (2 * (st % 3) + i) * 2048 + r * 256))
            m = [mf(ACC0 + 16 * mat + 4 * u, v(wf(k, i), 4), xfrag(2 * st + i, u), st == 0 and i == 0)
                 for u in range(4) for i in range(2)]
            groups.append(dict(m=m, r=rd, ep=f'h{part}'))


def hown(e):
    return H + 4 * e if e < 12 else ACC1 + 4 * (e - 12)


DB = ACC1 + 16
STG = XV


def dacc(r):
    return ACC1 + 32 if r % 2 == 0 else ACC0 + 32


def dslot(r):
    return ((r + 2) % 4) * L_DSLOT


def add_down(r):
    mark[f'D{r}'] = len(groups)
    acc = dacc(r)
    delta = (dslot(r) - dslot(r - 1)) & 0xffffffff
    for who in range(2):
        for c in range(2):
            for pr in range(2):
                k = len(groups)
                rd = []
                if r > 0 and pr == 0:
                    rd.append(f'v_add_u32 v{DB + 2 * who + c}, {delta}, v{DB + 2 * who + c}')
                for i in range(2):
                    for q in range(2):
                        rd.append(trr(k, i, q, DB + 2 * who + c, q * 18432 + (2 * pr + i) * 2048))
                m = []
                for u in range(4):
                    for i in range(2):
                        e = 4 * (2 * pr + i) + u
                        B = v(hown(e), 4) if who == 0 else a(4 * e, 4)
                        m.append(mf(acc + 16 * c + 4 * u, v(wf(k, i), 4), B, who == 0 and pr == 0 and i == 0))
                groups.append(dict(m=m, r=rd, ep=f'd{r}'))
    k = len(groups)
    rd = []
    for c in range(2):
        if r > 0:
            rd.append(f'v_add_u32 v{DB + 4 + c}, {delta}, v{DB + 4 + c}')
        for q in range(2):
            rd.append(trr(k, c, q, DB + 4 + c, q * 18432))
    m = [mf(acc + 16 * c + 4 * u, v(wf(k, c), 4), a(64 + 4 * u, 4), False) for c in range(2) for u in range(4)]
    groups.append(dict(m=m, r=rd, ep=f'd{r}'))


add_full_round(0, 0)
add_full_round(1, 3)
add_full_round(2, 6)
add_full_round(3, 9)
add_q()
add_half()
for r in range(9):
    add_down(r)
mark['END'] = len(groups)
NG = len(groups)

gstart = [0]
for g in groups:
    gstart.append(gstart[-1] + len(g['m']))
NM = gstart[-1]
aux = [[] for _ in range(NM)]
pre = [[] for _ in range(NM)]
ep_start = {}
ep_start['n0'] = 0


def ep_of(k):
    return groups[k]['ep'] if k < NG else 'att'


for k in range(NG):
    n = len(groups[k]['m'])
    b = gstart[k]
    pre[b].append(P('need', v(wf(k, 0), 8)))
    last_before_bar = k + 2 < NG and ep_of(k + 3) != ep_of(k + 2)
    if k + 2 < NG:
        rd = groups[k + 2]['r']
        span = n // 2 if (last_before_bar and n == 8) else n
        for i, x in enumerate(rd):
            aux[b + (i * span) // len(rd)].append(x)
    if last_before_bar:
        e = ep_of(k + 3)
        tags = {'att': ['kvD', 'kvA']}.get(e, [e])
        aux[b + n - 1].append(('BAR', tags))
        ep_start[e] = b + n


def spread(items, lo, hi):
    n = len(items)
    for i, it in enumerate(items):
        j = lo + (i * (hi - lo)) // n
        if j + 1 < hi and (i + 1 == n or lo + ((i + 1) * (hi - lo)) // n > j + 1) and len(aux[j + 1]) < len(aux[j]):
            j += 1
        if aux[j] and isinstance(aux[j][-1], tuple) and aux[j][-1][0] == 'BAR':
            aux[j][-1:-1] = it
        else:
            aux[j] += it


order = ['n%d' % i for i in range(13)] + ['h0', 'h1', 'h2'] + ['d%d' % i for i in range(9)] + ['att']


FRAC = OPT.get('frac', 0.95)


def ep_span(e, frac=FRAC):
    lo = ep_start[e]
    hi = ep_start[order[order.index(e) + 1]] if e != 'att' else NM
    return lo, lo + max(1, int((hi - lo) * frac))


def touch(i):
    if not OPT['touch'] & 2:
        return []
    out = []
    if i == 0:
        out += [[f's_and_b32 s6, s{sM}, 7'], [f's_lshl_b32 s6, s6, 2'], [f's_add_u32 s6, s6, s{sW}'], [f's_mul_i32 s7, s{sS}, 331776']]
    else:
        out += [['s_add_u32 s6, s6, 32']]
    if i in (2, 3, 4, 5):
        out += [['s_cmp_ge_u32 s6, 72', 's_cselect_b32 s4, 72, 0'], ['s_sub_u32 s6, s6, s4'], [f's_mul_i32 s4, s4, {12 * 9216 // 72}'],
                ['s_add_u32 s7, s7, s4']]
    if i == 6:
        out += [['s_min_u32 s6, s6, 71']]
    out += [['s_lshl_b32 s4, s6, 7'], ['s_add_u32 s4, s4, s7'], [f'buffer_load_dword v{vDUM}, v{vTCH}, {srd(SD)}, s4 offen']]
    return out


adv = [[f'v_add_u32 v{vDMA}, 128, v{vDMA}']]

rb = readback(1)
RBN = OPT.get('rbn', 24)
first_rb = rb[:4]
spread([[x] for x in rb[4:]], 0, RBN - 5)
aux[RBN - 1].append(('BAR', []))
spread(dma_full(1, 3, 'n1')[5:], RBN, RBN + 36)
spread(touch_w(3) + touch_w(4), RBN + 36, ep_start['n1'] - 1)


def stage_items(n, q):
    st0 = 3 * (n % 3)
    return (adv if st0 == 0 and q == 0 else []) + dma_full(n, st0, f'n{n}')[5 * q:5 * q + 5]


stq = [(n, q) for n in range(2, 12) for q in range(3)]
for e in range(1, 10):
    cnt = 4 if e <= 3 else 3
    items = []
    for n, q in stq[:cnt]:
        assert e + 1 <= n <= e + 2
        items += stage_items(n, q)
    del stq[:cnt]
    h_ = len(items) // 2
    items = (touch_w(e + 4) if e + 4 < 12 else []) + items[:h_] + (touch(e - 3) if e >= 3 else []) + items[h_:]
    spread(items, *ep_span(f'n{e}'))
assert not stq

side = []


def poll(label, load, reg, want):
    side.append(f"""{label}_slow:
    s_mov_b32 s{sCNT}, 0
{label}_loop:
    s_sleep 4
    {load}
    s_waitcnt vmcnt(0)
    v_cmp_gt_u32 vcc, {want}, v{reg}
    s_add_u32 s{sCNT}, s{sCNT}, 1
    s_nop 4
    s_cmp_eq_u64 vcc, 0
    s_cbranch_scc1 {label}_ok
    s_cmp_lt_u32 s{sCNT}, 0x4000
    s_cbranch_scc1 {label}_loop
    s_branch {label}_ok
""")
    return [f'v_cmp_gt_u32 vcc, {want}, v{reg}', 's_cmp_eq_u64 vcc, 0', f's_cbranch_scc0 {label}_slow', f'{label}_ok:']


def arrive(ep, tags, off, cond):
    g = aux[ep_start[ep] - 1]
    for i, x in enumerate(g):
        if isinstance(x, tuple):
            g[i] = ('BAR', x[1] + tags)
    spread(cond + [[f'v_min_u32 v{vT2}, 1, v{vT2}'], [f'v_lshlrev_b32 v{vT2}, 30, v{vT2}'], [f'v_mov_b32 v{vT3}, 1'],
                   [f'buffer_atomic_add v{vT3}, v{vT2}, {srd(SB)}, 0 offen offset:{off} sc1']],
           ep_start[ep], ep_start[ep] + 12)


ARR = OPT.get('arr', 6)
if OPT.get('stag', 1):
    g_ = aux[ep_start[f'n{ARR}'] - 1]
    g_[-1] = ('BAR', g_[-1][1] + ['early'])
    for e in range(4):
        it = [[f'v_mov_b32 v{vT3}, 1'], [f's_and_b32 s{sT1}, s{sS}, 3']] if e == 0 else []
        it += [[f's_cmp_eq_u32 s{sT1}, {e}', f's_cselect_b32 s{sT0}, s{sW}, 1'], [f'v_or_b32 v{vT2}, s{sT0}, v{vL}'],
               [f'v_lshlrev_b32 v{vT2}, 16, v{vT2}'], [f'buffer_atomic_add v{vT3}, v{vT2}, {srd(SB)}, 0 offen sc1']]
        lo = ep_start[f'n{ARR}'] + 48 * e
        spread(it, lo, lo + 14)
else:
    arrive(f'n{ARR}', ['early'], 0, [[f'v_lshl_or_b32 v{vT2}, s{sW}, 6, v{vL}']])
def code_touch(lab, ep):
    spread([[f's_getpc_b64 s[0:1]', f'{lab}:'], [f'v_lshrrev_b32 v{vT2}, 4, v{vL}'], [f'v_add_u32 v{vT2}, s18, v{vT2}'],
            [f'v_min_u32 v{vT2}, (L_end-{lab})/128, v{vT2}'], [f'v_lshlrev_b32 v{vT2}, 7, v{vT2}'],
            [f'global_load_dword v{vDUM}, v{vT2}, s[0:1]']], ep_start[ep] + 62, ep_start[ep] + 80)


if OPT.get('ctouch', 1):
    code_touch('L_ct1', 'n8')
ld0 = f'buffer_load_dword v{vT3}, off, {srd(SB)}, 0 sc1'
spread([[ld0]], ep_start['n9'] + 2, ep_start['n9'] + 4)
qd = [poll('L_p0', ld0, vT3, '0x100')]
qd += [[x] for x in f"""v_lshlrev_b32 v{vTCH}, 4, v{vL}
s_mul_i32 s{sT0}, s{sW}, 214
s_lshr_b32 s{sT0}, s{sT0}, 4
s_lshl_b32 s{sT0}, s{sT0}, 10
s_mul_i32 s{sT2}, s{sS}, 55296
s_add_u32 s{sT2}, s{sT2}, s{sT0}""".split('\n')]
for j in range(14):
    if j % 4 == 0:
        qd.append([f's_add_u32 m0, s{sT0}, {L_QIMG + j * 1024}'])
        qd.append([f's_add_u32 s{sT1}, s{sT2}, {WS_WQT + j * 1024}'])
    qd.append([T(f'buffer_load_dwordx4 v{vTCH}, {srd(SWS)}, s{sT1} offen offset:{1024 * (j % 4)} sc1 lds', 'n12')])
spread(qd, *ep_span('n10'))


def dma_half(part):
    out = []
    for pr in range(3):
        out.append([f's_add_u32 m0, s{sT3}, {part * 24576 + pr * 4096}'])
        for i in range(2):
            out.append([T(f'buffer_load_dwordx4 v{vDMA2}, {srd(SW)}, s{TAB + 4 * (3 * part + pr) + 2 * i} offen offset:{2048 * i} lds', f'h{part}')])
    return out


half_setup = [[x] for x in f'''s_and_b32 s{sT0}, s{sW}, 1
s_lshr_b32 s{sT1}, s{sW}, 1
s_mul_i32 s{sT3}, s{sT1}, 12288
s_lshl_b32 s{sT1}, s{sT0}, 10
s_add_u32 s{sT3}, s{sT3}, s{sT1}
s_and_b32 s{sT1}, s{sS}, 1
s_xor_b32 s{sT1}, s{sT1}, 1
s_lshl_b32 s{sT1}, s{sT1}, 9
s_mul_i32 s{sT2}, s{sS}, 576
s_add_u32 s{sT2}, s{sT2}, s{sT1}
v_lshrrev_b32 v{vDMA2}, 2, v{vL}
v_lshl_add_u32 v{vDMA2}, s{sT0}, 4, v{vDMA2}
v_mul_u32_u24 v{vDMA2}, 9216, v{vDMA2}
v_bfe_u32 v{vT2}, v{vL}, 4, 2
v_and_b32 v{vT2}, 2, v{vT2}
v_xor_b32 v{vT2}, v{vT2}, v{vL}
v_and_b32 v{vT2}, 3, v{vT2}
v_lshlrev_b32 v{vT2}, 4, v{vT2}
v_add3_u32 v{vDMA2}, v{vDMA2}, v{vT2}, s{sT2}'''.split('\n')]
spread(half_setup, *ep_span('n9'))
spread(dma_half(0) + dma_half(1), *ep_span('n11'))
wd_setup = [[f's_mul_i32 s{sT1}, s{sS}, 331776']]
wd_setup2 = [[x] for x in f'''v_lshrrev_b32 v{vDMA}, 3, v{vL}
v_lshl_add_u32 v{vDMA}, s{sW}, 3, v{vDMA}
v_mul_u32_u24 v{vDMA}, 1152, v{vDMA}
v_lshrrev_b32 v{vT2}, 3, v{vL}
v_and_b32 v{vT2}, 6, v{vT2}
v_xor_b32 v{vT2}, v{vT2}, v{vL}
v_and_b32 v{vT2}, 7, v{vT2}
v_lshlrev_b32 v{vT2}, 4, v{vT2}
v_add3_u32 v{vDMA}, v{vDMA}, v{vT2}, s{sT1}
s_and_b32 s{sT0}, s{sS}, 1
s_mul_i32 s{sT2}, s{sT0}, 36864
s_xor_b32 s{sT0}, s{sT0}, 1
s_mul_i32 s{TAB + 8}, s{sT0}, {256 * 1152}
s_mul_i32 s{sWL}, s{sW}, 9216'''.split('\n')]
wd_setup2 += [[f's_add_u32 s{TAB + kap}, s{sT2}, {kap * 36864 - 1024 * (kap % 4)}'] for kap in range(8)]
spread(wd_setup + dma_half(2) + wd_setup2, *ep_span('n12', 0.95))


def dma_down(r):
    out = [] if r == 0 else list(adv)
    for kap in range(9):
        if kap % 4 == 0:
            out.append([f's_add_u32 m0, s{sWL}, {dslot(r) + kap * 1024}'])
        out.append([T(f'buffer_load_dwordx4 v{vDMA}, {srd(SD)}, s{TAB + kap} offen offset:{1024 * (kap % 4)} lds', f'd{r}')])
    return out


vHW, vHR, vH8W, vH8R = vRB1, vTCH, DB + 6, DB + 7
dn_setup = [[x] for x in f'''v_bfe_u32 v{vT2}, v{vL}, 2, 3
v_lshlrev_b32 v{DB}, 7, v{vT2}
v_lshrrev_b32 v{vT2}, 1, v{vT2}
s_and_b32 s{sT0}, s{sW}, 1
s_lshl_b32 s{sT1}, s{sT0}, 1
v_xor_b32 v{vT2}, s{sT1}, v{vT2}
v_lshl_add_u32 v{DB}, v{vT2}, 5, v{DB}
v_and_b32 v{vT2}, 3, v{vL}
v_lshl_add_u32 v{DB}, v{vT2}, 3, v{DB}
v_lshrrev_b32 v{vT2}, 5, v{vL}
v_mul_u32_u24 v{vT2}, 9216, v{vT2}
v_add_u32 v{DB}, v{DB}, v{vT2}
v_add_u32 v{DB + 4}, {dslot(0) + 8192}, v{DB}
v_xor_b32 v{DB + 5}, 32, v{DB + 4}
s_lshl_b32 s{sT1}, s{sT0}, 10
s_add_u32 s{sT1}, s{sT1}, {dslot(0)}
s_xor_b32 s{sT2}, s{sT1}, 1024
v_add_u32 v{DB + 2}, s{sT2}, v{DB}
v_add_u32 v{DB}, s{sT1}, v{DB}
v_xor_b32 v{DB + 1}, 32, v{DB}
v_xor_b32 v{DB + 3}, 32, v{DB + 2}
s_mul_i32 s{sT1}, s{sW}, 6144
v_lshl_add_u32 v{vHW}, v{vL}, 4, s{sT1}
s_xor_b32 s{sT1}, s{sW}, 1
s_mul_i32 s{sT1}, s{sT1}, 6144
v_lshl_add_u32 v{vHR}, v{vL}, 4, s{sT1}
v_lshl_add_u32 v{vH8W}, s{sT0}, 3, v{vHW}
v_lshl_add_u32 v{vH8R}, s{sT0}, 3, v{vHR}'''.split('\n')]
assert dslot(0) % 2048 == 0
spread(dma_down(0), *ep_span('h0'))
spread(dn_setup, gstart[mark['RH']] + 1, ep_start['h1'] - 1)


def hx_write(es):
    return [[f'ds_write_b128 v{vHW}, {v(hown(e), 4)} offset:{(e // 6) * 24576 + (e % 6) * 1024}'] for e in es]


def hx_read(es):
    return [[f'ds_read_b128 {a(4 * (e ^ 2), 4)}, v{vHR} offset:{(e // 6) * 24576 + (e % 6) * 1024}'] for e in es]


spread(dma_down(1) + hx_write(range(0, 6)), *ep_span('h1', 0.85))
spread(hx_read(range(0, 6)) + hx_write(range(6, 12)), *ep_span('h2', 0.85))
BY = gstart[mark['D0'] + 4] - 1
spread(hx_read(range(6, 12)), ep_start['d0'], ep_start['d0'] + 12)
aux[BY].append(('BAR', []))
k8_reads = [[f'ds_read_b128 {a(64 + 4 * u, 4)}, v{vHW if u < 2 else vHR} offset:{49152 + 4096 + (u & 1) * 1024}'] for u in range(4)]
spread(hx_read(range(12, 16)) + k8_reads, BY + 1, BY + 7)
spread(dma_down(2), BY + 7, ep_start['d1'] - 1)
spread(dma_down(3) + dma_down(4), *ep_span('d1', 0.9))
for r in range(5, 9):
    spread(dma_down(r), *ep_span(f'd{r - 3}'))


def dma_kv(lds_base, src_base, npieces, tag):
    out = [[f's_mul_i32 s{sT0}, s{sW}, {npieces * 1024}']]
    for j in range(npieces):
        if j % 4 == 0:
            out.append([f's_add_u32 m0, s{sT0}, {lds_base + j * 1024}'])
            out.append([f's_add_u32 s{sT1}, s{sT0}, {WS_KV + src_base + j * 1024}'])
        out.append([T(f'buffer_load_dwordx4 v{vDMA2}, {srd(SWS)}, s{sT1} offen offset:{1024 * (j % 4)} sc1 lds', tag)])
    return out


arrive('d0', ['kvst'], 128, [[f's_cmp_ge_u32 s{sS}, 6', f's_cselect_b32 s{sT0}, 1, s{sW}'], [f'v_or_b32 v{vT2}, s{sT0}, v{vL}']])
ldA = f'buffer_load_dword v{vT3}, off, {srd(SB)}, 0 offset:128 sc1'
spread([[ldA], [f'v_lshlrev_b32 v{vDMA2}, 4, v{vL}']], ep_start['d5'], ep_start['d5'] + 4)
spread([poll('L_pa', ldA, vT3, '0x60')] + dma_kv(L_KV0, 0, 13, 'kvD'), *ep_span('d6'))
spread(dma_kv(0, 10 * REC, 9, 'kvA'), *ep_span('d7'))
spread(dma_kv(L_DSLOT, 10 * REC + L_DSLOT, 9, 'kvB'), *ep_span('d8'))
spread(dma_kv(2 * L_DSLOT, 10 * REC + 2 * L_DSLOT, 9, 'kvC'), ep_start['att'], NM)

fills = []


def gelu_pair(g, u_, uu, dst):
    t0, t1 = vT0, vT1
    return [f'v_mul_f32 v{t0}, v{g}, v{g}', f'v_mul_f32 v{t1}, v{g + 1}, v{g + 1}',
            f'v_fma_f32 v{t0}, v{t0}, v{K1 + uu}, v{K0 + uu}', f'v_fma_f32 v{t1}, v{t1}, v{K1 + uu}, v{K0 + uu}',
            f'v_mul_f32 v{t0}, v{t0}, v{g}', f'v_mul_f32 v{t1}, v{t1}, v{g + 1}',
            f'v_exp_f32 v{t0}, v{t0}', f'v_exp_f32 v{t1}, v{t1}',
            f'v_mul_f32 v{u_}, v{g}, v{u_}',
            f'v_fma_f32 v{t0}, v{t0}, v{KR + uu}, v{KR + uu}', f'v_fma_f32 v{t1}, v{t1}, v{KR + uu}, v{KR + uu}',
            f'v_rcp_f32 v{t0}, v{t0}', f'v_rcp_f32 v{t1}, v{t1}',
            f'v_mul_f32 v{u_ + 1}, v{g + 1}, v{u_ + 1}',
            f'v_mul_f32 v{t0}, v{t0}, v{u_}', f'v_mul_f32 v{t1}, v{t1}, v{u_ + 1}',
            f'v_cvt_pk_bf16_f32 v{dst}, v{t0}, v{t1}']


def gelu_full(rho):
    acc = ACC0 if rho % 2 == 0 else ACC1
    out = []
    for c in range(2):
        for u in range(4):
            for pr in range(2):
                out += gelu_pair(acc + 32 * c + 4 * u + 2 * pr, acc + 32 * c + 16 + 4 * u + 2 * pr, u, hown(4 * rho + u) + 2 * c + pr)
    return out


vKS, vKP, vKT, vSTA, vSTB, vLC = [ACC0 + 56 + i for i in range(6)]
fills.append((RBN, ep_start['n1'] - 8, ln_den(3, 3)))

G0 = ACC1


def o_addr(va, vb, t):
    return [f's_lshl_b32 s{sT1}, s{sI1}, 4', f'v_xor_b32 v{t}, s{sT1}, v{vL}', f'v_lshlrev_b32 v{va}, 4, v{t}',
            f'v_lshlrev_b32 v{vb}, 3, v{t}', f'v_lshrrev_b32 v{t}, 5, v{vL}', f'v_lshl_add_u32 v{vb}, v{t}, 30, v{vb}',
            f's_lshl_b32 s{sT0}, s{sMB}, 4', f's_add_u32 s{sT0}, s{sT0}, s{sS}', f's_mul_i32 s{sT0}, s{sT0}, 2304',
            f's_add_u32 s{sT0}, s{sT0}, {WS_O}']


def flag_addr(va):
    return [f'v_min_u32 v{va}, 1, v{vL}', f'v_lshlrev_b32 v{va}, 30, v{va}', f's_lshl_b32 s{sT1}, s{sM}, 4',
            f's_add_u32 s{sT1}, s{sT1}, s{sS}', f's_lshl_b32 s{sT1}, s{sT1}, 2', f's_add_u32 s{sT1}, s{sT1}, s{sW}',
            f's_lshl_b32 s{sT1}, s{sT1}, 2', f's_add_u32 s{sT1}, s{sT1}, {WS_FLAG}']


GD = H + 28
r0g = [P('waittag', ({'gth'}, False))]
for j in range(2):
    r0g += [f'ds_read_b64_tr_b16 {v(GD + 4 * j + 2 * rd_, 2)}, v{vGS + j} offset:{128 * rd_}' for rd_ in range(2)]
r0s = [f'v_add_u32 v{GD + 12}, s{sJQ}, v{G0 + 3}', f'v_add_u32 v{GD + 13}, s{sJO}, v{G0 + 3}']
r0s += o_addr(GD + 14, GD + 15, G0 + 11) + [f's_mov_b32 s{sJQ}, s{sT0}']
r0s += [f'v_mov_b32 v{GD + 8 + i}, -1' for i in range(4)]
r0s += flag_addr(GD + 16) + [f's_mov_b32 s{sJO}, s{sT1}', f'v_mov_b32 v{GD + 17}, 0']
est_ = [T(f'buffer_store_dwordx4 {v(GD, 4)}, v{GD + 12}, {srd(SWS)}, 0 offen sc1', 'early'),
        T(f'buffer_store_dwordx4 {v(GD + 4, 4)}, v{GD + 13}, {srd(SWS)}, 0 offen sc1', 'early'),
        T(f'buffer_store_dwordx4 {v(GD + 8, 4)}, v{GD + 14}, {srd(SWS)}, s{sJQ} offen sc1', 'early'),
        T(f'buffer_store_dwordx4 {v(GD + 8, 4)}, v{GD + 14}, {srd(SWS)}, s{sJQ} offen offset:1024 sc1', 'early'),
        T(f'buffer_store_dwordx2 {v(GD + 8, 2)}, v{GD + 15}, {srd(SWS)}, s{sJQ} offen offset:2048 sc1', 'early'),
        T(f'buffer_store_dword v{GD + 17}, v{GD + 16}, {srd(SWS)}, s{sJO} offen sc1', 'early')]
lo = ep_start['n3'] + OPT.get('est', 36)
spread([[x] for x in est_], lo, lo + OPT.get('estw', 150))
PK = G0 + 16
t1_, t2_, t3_, d_ = G0 + 4, G0 + 5, G0 + 6, G0 + 7
r0 = f"""s_lshl_b32 s{sT0}, s{sW}, 7
v_and_b32 v{G0}, 15, v{vL}
v_lshlrev_b32 v{G0 + 3}, 4, v{vL}
s_add_u32 s{sT0}, s{sT0}, {L_STATS}
v_lshl_add_u32 v{G0 + 1}, v{G0}, 2, s{sT0}
v_xor_b32 v{G0 + 2}, 128, v{G0 + 1}
ds_read_b32 v{KR}, v{G0 + 1}
ds_read_b32 v{KR + 1}, v{G0 + 1} offset:64
ds_read_b32 v{KR + 2}, v{G0 + 2}
ds_read_b32 v{KR + 3}, v{G0 + 2} offset:64
s_lshr_b32 s9, s{sMB}, 1
s_mul_i32 s9, s9, {REC}
s_add_u32 s9, s9, {WS_KV}
s_lshl_b32 s10, s{sW}, 8
s_add_u32 s10, s10, {L_KVS}
v_lshrrev_b32 v{t1_}, 5, v{vL}
v_mul_u32_u24 v{t1_}, 1152, v{t1_}
v_add_u32 v{t1_}, s10, v{t1_}
v_and_b32 v{t2_}, 31, v{vL}
v_lshl_add_u32 v{PK + 1}, v{t2_}, 3, v{t1_}
v_and_b32 v{t2_}, 17, v{vL}
v_lshl_add_u32 v{t1_}, v{t2_}, 3, v{t1_}
v_bfe_u32 v{t2_}, v{vL}, 1, 1
v_lshl_add_u32 v{t1_}, v{t2_}, 6, v{t1_}
v_bfe_u32 v{t2_}, v{vL}, 2, 2
v_lshl_add_u32 v{PK + 2}, v{t2_}, 4, v{t1_}
s_and_b32 s{sT0}, s{sW}, 1
s_lshl_b32 s{sT1}, s{sT0}, 10
s_lshl_b32 s{sT2}, s{sS}, 9
s_add_u32 s{sT1}, s{sT1}, s{sT2}
s_lshl_b32 s{sT2}, s{sT0}, 3
s_add_u32 s{sT2}, s{sT2}, 2040""".split('\n')
r0 += [[f's_cmp_eq_u32 s{sS}, 4', f's_cselect_b32 s{sT1}, s{sT2}, s{sT1}', f's_cselect_b32 s{sT3}, 1, 2',
        f's_cselect_b64 s[{sMK4}:{sMK4 + 1}], -1, 0'], [f's_cmp_lt_u32 s{sS}, 2', f's_cselect_b32 s{sT3}, 0, s{sT3}']]
r0 += f"""s_lshl_b32 s{sT2}, s{sI1}, 5
v_xor_b32 v{t1_}, s{sT2}, v{vL}
v_lshl_add_u32 v{PK}, v{t1_}, 3, s{sT1}
v_and_b32 v{t2_}, 1, v{vL}
v_cmp_gt_u32 vcc, s{sT3}, v{t2_}
v_mov_b32 v{t3_}, {OOB}
v_lshrrev_b32 v{t1_}, 3, v{t1_}
v_cndmask_b32 v{PK}, v{PK}, v{t3_}, vcc
v_lshl_or_b32 v{t1_}, s{sT0}, 3, v{t1_}""".split('\n')
r0 += [[f's_cmp_eq_u32 s{sS}, 3', f's_cselect_b32 s{sT1}, 8, 0'],
       [f's_cmp_eq_u32 s{sS}, 5', f's_cselect_b32 s{sT1}, 10, s{sT1}', f's_cselect_b32 s{sT2}, 16, 0',
        f's_cselect_b32 s{sMK5}, 0x01010101, 0'], f's_mov_b32 s{sMK5 + 1}, s{sMK5}', f's_lshr_b32 s{sT3}, 0x2c, s{sS}',
       [f's_and_b32 s{sT3}, s{sT3}, 1', f's_cselect_b64 s[{sMKV}:{sMKV + 1}], -1, 0']]
r0 += f"""v_and_b32 v{d_}, 7, v{vL}
v_add_u32 v{d_}, s{sT1}, v{d_}
v_cndmask_b32 v{d_}, v{d_}, 18, s[{sMK5}:{sMK5 + 1}]
v_cmp_gt_u32 vcc, s{sT2}, v{d_}
v_and_b32 v{t2_}, 14, v{d_}
v_xor_b32 v{t1_}, v{t1_}, v{t2_}
v_lshlrev_b32 v{t1_}, 3, v{t1_}
v_lshl_add_u32 v{t1_}, v{d_}, 7, v{t1_}
v_add_u32 v{t1_}, 2560, v{t1_}
v_cndmask_b32 v{t1_}, v{t1_}, v{t3_}, vcc
v_cndmask_b32 v{PK}, v{PK}, v{t1_}, s[{sMKV}:{sMKV + 1}]
v_mul_u32_u24 v{t1_}, 72, v{G0}
v_add_u32 v{t1_}, s8, v{t1_}
v_lshrrev_b32 v{t2_}, 4, v{vL}
v_lshl_add_u32 v{PK + 3}, v{t2_}, 3, v{t1_}
v_cmp_gt_u32 vcc, 2, v{t2_}
v_add_u32 v{t1_}, 32, v{PK + 3}
v_and_b32 v{t2_}, 1, v{t2_}
v_lshl_add_u32 v{t2_}, v{t2_}, 3, s10
v_lshl_add_u32 v{t2_}, v{G0}, 4, v{t2_}
v_mov_b32 v{d_}, {f2u(1.0 / C0)}
v_mov_b32 v{PK + 5}, {f2u(QS / C0)}
v_cndmask_b32 v{PK + 4}, v{t2_}, v{t1_}, vcc
v_cndmask_b32 v{PK + 5}, v{d_}, v{PK + 5}, vcc
v_add_u32 v{t1_}, s8, v{G0 + 3}
ds_write_b128 v{t1_}, {v(PK, 4)}""".split('\n')
for u in range(4):
    r0 += [f'v_rcp_f32 v{K0 + u}, v{KR + u}', f'v_mul_f32 v{KR + u}, v{KR + u}, v{KR + u}',
           f'v_mul_f32 v{K1 + u}, v{K0 + u}, v{K0 + u}', f'v_mul_f32 v{K0 + u}, {f2u(C0)}, v{K0 + u}',
           f'v_mul_f32 v{K1 + u}, {f2u(0.044715)}, v{K1 + u}', f'v_mul_f32 v{K1 + u}, v{K1 + u}, v{K0 + u}']
    if u == 0:
        r0.append(f'ds_write_b64 v{t1_}, {v(PK + 4, 2)} offset:1024')
fills.append((ep_start['n1'], gstart[mark['R1']], r0g + r0 + r0s))

unpark = [f'v_lshl_add_u32 v{vT0}, v{vL}, 4, s8', f'ds_read_b128 {v(vKS, 4)}, v{vT0}', f'ds_read_b64 {v(vKS + 4, 2)}, v{vT0} offset:1024']
qe = []
for tile in (2, 0, 1):
    if tile != 1:
        qe += [f"v_mul_f32 v{vT0 + u}, {f'v{vLC}' if tile == 2 else f2u(QS / C0)}, v{K0 + u}" for u in range(2)]
    for u in range(2):
        A = QACC + 8 * tile + 4 * u
        qe += [f'v_mul_f32 v{A + j}, v{vT0 + u}, v{A + j}' for j in range(4)]
        qe += [f'v_cvt_pk_bf16_f32 v{A}, v{A}, v{A + 1}', f'v_cvt_pk_bf16_f32 v{A + 1}, v{A + 2}, v{A + 3}']
        qe += [f'ds_write_b64 v{vSTB if tile == 2 else vSTA}, {v(A, 2)} offset:{u * 1152 + (40 if tile == 1 else 0)}']
    A = QACC + 16
    if tile == 2:
        qe += [f'ds_read_b64 {v(A + 2, 2)}, v{vKP}', f'ds_read_b64_tr_b16 {v(A + 6, 2)}, v{vKT}']
    if tile == 0:
        qe += [f'v_mov_b32 v{A}, 0x3f803f80',
               f'v_cndmask_b32 v{A + 2}, v{A + 2}, v{A + 3}, s[{sMK4}:{sMK4 + 1}]',
               f'v_cndmask_b32 v{A + 3}, v{A + 3}, v{A}, s[{sMK4}:{sMK4 + 1}]',
               f'v_cndmask_b32 v{A + 2}, v{A + 2}, v{A + 6}, s[{sMKV}:{sMKV + 1}]',
               f'v_cndmask_b32 v{A + 3}, v{A + 3}, v{A + 7}, s[{sMKV}:{sMKV + 1}]',
               f'v_cndmask_b32 v{A + 2}, v{A + 2}, v{A}, s[{sMK5}:{sMK5 + 1}]',
               f'v_cndmask_b32 v{A + 3}, v{A + 3}, v{A}, s[{sMK5}:{sMK5 + 1}]',
               T(f'buffer_store_dwordx2 {v(A + 2, 2)}, v{vKS}, {srd(SWS)}, s9 offen sc1', 'kvst')]
g3 = gelu_full(3)
NQ = 17 * OPT.get('nq', 10)
assert NQ >= 17 * 4
fills.append((gstart[mark['R1']] + 4, gstart[mark['R2']], gelu_full(0)))
fills.append((gstart[mark['R2']] + 4, gstart[mark['R3']], gelu_full(1)))
fills.append((gstart[mark['R3']] + 4, gstart[mark['Q']], gelu_full(2)))
fills.append((gstart[mark['Q']] + 4, gstart[mark['RH']], unpark + g3[:NQ]))
fills.append((gstart[mark['RH']] + 4, ep_start['d0'], qe + g3[NQ:]))
fills.append((ep_start['d0'], gstart[mark['D0']], flat(hx_write(range(12, 16)))))
gh = []
for u in range(4):
    for pr in range(2):
        gh += gelu_pair(ACC0 + 4 * u + 2 * pr, ACC0 + 16 + 4 * u + 2 * pr, u, ACC0 + 4 * u + pr)
    gh.append(f'ds_write_b64 v{vH8W if u < 2 else vH8R}, {v(ACC0 + 4 * u, 2)} offset:{49152 + 4096 + (u & 1) * 1024}')
fills.append((gstart[mark['D0']] + 2, BY - 1, gh))

vPS = K0
QA, QB, QR = 10, 14, 18
ps_setup = f'''s_lshl_b32 s{sT2}, s{sMB}, 4
s_add_u32 s{sT2}, s{sT2}, s{sS}
s_xor_b32 s{sT3}, s{sT2}, 16
s_mul_i32 s{sT2}, s{sT2}, 36864
s_mul_i32 s{sT3}, s{sT3}, 36864
s_and_b32 s{sCNT}, s{sW}, 1
s_lshl_b32 s{sCNT}, s{sCNT}, 11
v_lshl_add_u32 v{vPS}, v{vL}, 4, s{sCNT}
v_add_u32 v{vPS + 1}, s{sT3}, v{vPS}
v_add_u32 v{vPS}, s{sT2}, v{vPS}'''.split('\n')


ND = OPT.get('nd', 2)
deferred = []


def part_out(r):
    acc = dacc(r)
    stg = STG + 16 * (r % 2)
    out = [f's_mov_b32 s{sT2}, {WS_P + r * 4096}'] if r < 8 else []
    for c in range(2):
        for blk in range(2):
            d = stg + 8 * c + 4 * blk
            for uu in range(2):
                A = acc + 16 * c + 4 * (2 * blk + uu)
                out += [f'v_cvt_pk_bf16_f32 v{d + 2 * uu}, v{A}, v{A + 1}', f'v_cvt_pk_bf16_f32 v{d + 2 * uu + 1}, v{A + 2}, v{A + 3}']
            st = lambda src: T(f'buffer_store_dwordx4 {src}, v{vPS + blk}, {srd(SWS)}, s{sT2} offen offset:{1024 * c} sc1', 'pst')
            if r == 8:
                deferred.insert(2 * c + blk, (r, st(v(d, 4))))
            elif (2 * blk + c) < ND:
                out.append(st(v(d, 4)))
            else:
                z = 164 + 4 * len(deferred)
                out += [f'v_accvgpr_write_b32 a{z + j}, v{d + j}' for j in range(4)]
                deferred.append((r, st(a(z, 4))))
    return out


vKB, vKRB, vVB, vDL, vIDX = ACC0, ACC0 + 1, ACC0 + 2, ACC0 + 6, ACC0 + 8
q_rb = f'''s_mul_i32 s{sT3}, s{sW}, 2304
s_add_u32 s{sT3}, s{sT3}, {L_STASH}
v_and_b32 v{vT0}, 31, v{vL}
v_lshrrev_b32 v{vT1}, 5, v{vL}
v_mul_u32_u24 v{vT2}, 72, v{vT0}
v_add_u32 v{vT2}, s{sT3}, v{vT2}
v_mul_u32_u24 v{vIDX}, 36, v{vT1}
v_add_u32 v{vIDX}, v{vIDX}, v{vT2}
v_lshl_add_u32 v{vT2}, v{vT1}, 4, v{vT2}
ds_read2_b64 {v(QA, 4)}, v{vT2} offset0:0 offset1:1
ds_read2_b32 {v(QB, 2)}, v{vT2} offset0:9 offset1:10
ds_read2_b32 {v(QB + 2, 2)}, v{vT2} offset0:11 offset1:12
ds_read_b32 v{QR}, v{vIDX} offset:32
v_mov_b32 v{QR + 1}, 0'''.split('\n')
att_setup = f'''v_lshlrev_b32 v{vKB}, 4, v{vL}
v_add_u32 v{vKB}, {L_KV0}, v{vKB}
v_and_b32 v{vT0}, 31, v{vL}
v_lshrrev_b32 v{vT1}, 5, v{vL}
v_lshlrev_b32 v{vKRB}, 4, v{vT0}
v_add_u32 v{vKRB}, {L_KV0 + 2048}, v{vKRB}'''.split('\n')
att_setup += [[f'v_cmp_eq_u32 vcc, 22, v{vT0}', 's_nop 1', f'v_cndmask_b32 v{vT0}, v{vT0}, 18, vcc']]
att_setup += f'''v_bfe_u32 v{vT2}, v{vT0}, 1, 3
v_xor_b32 v{vT2}, v{vT2}, v{vT1}
v_lshlrev_b32 v{vT2}, 4, v{vT2}
v_lshl_add_u32 v{vT2}, v{vT0}, 7, v{vT2}
v_add_u32 v{vT2}, {L_KV0 + 2560}, v{vT2}
v_mov_b32 v{vT1}, {L_OOR}
v_mov_b32 v{vDL}, {(-L_KV0) & 0xffffffff}
v_mov_b32 v{vDL + 1}, {13 * REC}'''.split('\n')
att_setup += [[f'v_cmp_lt_u32 vcc, 18, v{vT0}', 's_nop 1', f'v_cndmask_b32 v{vVB}, v{vT2}, v{vT1}, vcc',
               f'v_cndmask_b32 v{vDL}, v{vDL}, 0, vcc', f'v_cndmask_b32 v{vDL + 1}, v{vDL + 1}, 0, vcc']]
att_setup += [f'v_xor_b32 v{vVB + f}, {32 * f}, v{vVB}' for f in range(1, 4)]
att_setup += [f'v_mov_b32 v{vIDX}, 0xdddddddd']
for r in range(1, 9):
    extra = {1: ps_setup, 2: q_rb, 3: att_setup}.get(r, [])
    fl = (extra + part_out(r - 1)) if r == 1 else (part_out(r - 1) + extra)
    fills.append((gstart[mark[f'D{r}']] + 4, gstart[mark[f'D{r + 1}' if r < 8 else 'END']] - 2, fl))


def c_of(x):
    if isinstance(x, list):
        return sum(c_of(y) for y in x)
    if isinstance(x, tuple):
        return 12
    if isinstance(x, Ins):
        return 4 if x.pseudo else cost(x.text)
    if x.endswith(':'):
        return 0
    return cost(x)


auxc = [c_of(a_) for a_ in aux]
for i in range(1, NM):
    auxc[i - 1] += c_of(pre[i])
fillat = [[] for _ in range(NM)]
for lo, hi, fl in fills:
    tot = c_of(fl)
    a0, a1 = 0.0, 4000.0
    for _ in range(50):
        L = (a0 + a1) / 2
        if sum(max(0.0, L - auxc[i]) for i in range(lo, hi)) >= tot:
            a1 = L
        else:
            a0 = L
    L = a1
    gi = 0
    credit = 0.0
    for i in range(lo, hi):
        credit += max(0.0, L - auxc[i])
        while gi < len(fl) and credit >= c_of(fl[gi]) / 2:
            credit -= c_of(fl[gi])
            fillat[i].append(fl[gi])
            gi += 1
    fillat[hi - 1] += fl[gi:]

E(groups[0]['r'][:2])
E(first_rb[:2])
E(groups[0]['r'][2:])
E(first_rb[2:])
E(groups[1]['r'])
E(sq3[12:])
allm = [m for g in groups for m in g['m']]
stamp_at = {gstart[mark[k]]: k for k in ('R1', 'R2', 'R3', 'Q', 'RH', 'D0', 'D1', 'D5')}
if OPT['stamp'] == 2:
    stamp_at = {ep_start[k]: k for k in order if k not in ('n0', 'd2', 'd3', 'd5', 'd7', 'd8')}
    stamp_at[RBN] = 'rbn'
    stamp_at[BY + 1] = 'BY'
est = 0
for i in range(NM):
    if i in stamp_at:
        print('est before', stamp_at[i], est)
    if i in stamp_at:
        E(stamp(stamp_at[i]))
    E(pre[i])
    E(allm[i])
    bar = None
    for x in aux[i]:
        if isinstance(x, tuple):
            bar = x
        else:
            E(x)
    E(fillat[i])
    if bar:
        E(barrier(bar[1]))
    est += max(16, 8 + auxc[i] + c_of(fillat[i]))
print('stream estimate cycles', est, 'mfma', NM)
E(stamp('down_end'))

S0 = 192
OA, OB = 96, 112
KM = 24
KRM = 32
VF = 72
XR = 48
vOUT = 40
vG = 55
PV = 137 + 3
NPA = 23


def sbuf(t):
    return S0 + 32 * (t % 2)


def rec_win(beta):
    if beta < 10:
        return 0, beta * REC
    if beta < 23:
        return 1, (beta - 10) * REC
    return 2, (beta - 23) * REC


win = {'k': 0, 'r': 0, 0: 0, 1: 0, 2: 0, 3: 0}


def bump(which, w_):
    out = []
    while win[which] < w_:
        if which == 'k' or which == 'r':
            reg = vKB if which == 'k' else vKRB
            out.append(f'v_add_u32 v{reg}, {((-L_KV0) & 0xffffffff) if win[which] == 0 else 13 * REC}, v{reg}')
        else:
            out.append(f'v_add_u32 v{vVB + which}, v{vDL + win[which]}, v{vVB + which}')
        win[which] += 1
    return out


def rd_k(t):
    w_, o = rec_win(t >> 1)
    return bump('k', w_) + [f'ds_read_b128 {v(KM + 4 * (t % 2), 4)}, v{vKB} offset:{o + (t & 1) * 1024}']


def rd_kr(beta):
    w_, o = rec_win(beta)
    return bump('r', w_) + [f'ds_read_b128 {v(KRM + 4 * (beta % 2), 4)}, v{vKRB} offset:{o}']


def rd_v(t, i):
    w_, o = rec_win(t >> 1)
    f = 2 * (t & 1) + i
    return bump(f, w_) + [f'ds_read_b128 {v(VF + 8 * (t % 3) + 4 * i, 4)}, v{vVB + f} offset:{o}']


def qk2b(t, S):
    return f'v_mfma_f32_32x32x4_2b_bf16 {v(S, 32)}, {v(KRM + 4 * ((t >> 1) % 2) + 2 * (t & 1), 2)}, {v(QR, 2)}, 0'


def qkm(t, S, hd):
    return f'v_mfma_f32_32x32x16_bf16 {v(S + 16 * hd, 16)}, {v(KM + 4 * (t % 2), 4)}, {v(QB if hd else QA, 4)}, {v(S + 16 * hd, 16)}'


def pv(t, hd, i):
    return f'v_smfmac_f32_32x32x32_bf16 {v(OB if hd else OA, 16)}, {v(VF + 8 * (t % 3) + 4 * i, 4)}, {v(sbuf(t) + 16 * hd + 8 * i, 8)}, v{vIDX}'


def set_m(mA, mB, shift):
    return [f'v_permlane32_swap_b32 v{mA}, v{mB}', f'v_max_f32 v{mA}, v{mA}, v{mB}',
            f'v_sub_f32 v{mA}, {f2u(-shift)}, v{mA}', f'v_cvt_pk_bf16_f32 v{mB}, v{mA}, v{mA}',
            f'v_and_b32 v{mB}, 0xffff0000, v{mB}', f'v_sub_f32 v{mA}, v{mA}, v{mB}',
            f'v_cvt_pk_bf16_f32 v{QR + 1}, v{mB}, v{mA}']


E(rd_kr(0) + rd_k(0) + rd_k(1))
po = part_out(8)
E(qk2b(0, sbuf(0)))
E(po)
E(rd_v(0, 0) + rd_v(0, 1))
E(qkm(0, sbuf(0), 0))
E([f'v_mov_b32 v{OA + i}, 0' for i in range(8)])
E(qkm(0, sbuf(0), 1))
E([f'v_mov_b32 v{OA + i}, 0' for i in range(8, 32)])
for hd in range(2):
    S = sbuf(0) + 16 * hd
    E(f'v_max3_f32 v{hd}, v{S}, v{S + 1}, v{S + 2}')
    for i in range(3, 15, 2):
        E(f'v_max3_f32 v{hd}, v{hd}, v{S + i}, v{S + i + 1}')
    E(f'v_max_f32 v{hd}, v{hd}, v{S + 15}')
E(set_m(0, 1, OPT['shift']))
E(qk2b(0, sbuf(0)))
fin_setup = []
E(f'''s_and_b32 s{sT0}, s{sS}, 3
s_lshl_b32 s{sT1}, s{sM}, 2
s_add_u32 s4, s{sT0}, s{sT1}
s_lshr_b32 s5, s{sS}, 2
s_mul_i32 s6, s4, 36864
s_mul_i32 s{sT0}, s5, 288
s_add_u32 s6, s6, s{sT0}
s_mov_b32 s{SA}, s22
s_mov_b32 s{SA + 1}, s23
s_mov_b32 s{SA + 2}, 2359296
v_lshl_or_b32 v0, s{sW}, 6, v{vL}
v_mov_b32 v3, {OOB}''')
for u in range(5):
    E(f'''v_add_u32 v1, {256 * u}, v0
v_mul_u32_u24 v2, 1821, v1
v_lshrrev_b32 v2, 16, v2
v_mul_u32_u24 v2, 864, v2
v_lshl_add_u32 v{vOUT + u}, v1, 3, v2''')
    if u == 1:
        E(qkm(0, sbuf(0), 0))
    if u == 3:
        E(qkm(0, sbuf(0), 1))
E(f'''v_cmp_lt_u32 vcc, 127, v0
s_nop 1
v_cndmask_b32 v{vOUT + 4}, v{vOUT + 4}, v3, vcc
s_lshl_b32 s7, s5, 2
s_add_u32 s7, s7, s{sW}
s_mul_i32 s7, s7, {41 * 1024}
s_add_u32 s7, s7, {WS_WOT}
s_lshl_b32 s8, s4, 2
s_add_u32 s8, s8, s{sW}
s_mul_i32 s14, s8, {4 * 2304}
s_add_u32 s14, s14, {WS_O}
s_mul_i32 s8, s8, {4 * 36864}
s_mul_i32 s{sT0}, s5, 9216
s_add_u32 s8, s8, s{sT0}
s_add_u32 s8, s8, {WS_P}''')
E(rd_v(1, 0) + rd_v(1, 1) + rd_k(2) + rd_kr(1))
E(stamp('att_start'))


def pfrag(i, nu):
    n = 9 * i + nu
    return a(164 + 4 * n, 4) if n < NPA else v(PV + 4 * (n - NPA), 4)


extra = [[] for _ in range(64)]
items = []
for q in range(41):
    if q % 4 == 0 and q:
        items.append('s_add_u32 s7, s7, 4096')
    items.append(f'buffer_load_dwordx4 {a(4 * q, 4)}, v{vDMA2}, {srd(SWS)}, s7 offen offset:{1024 * (q % 4)} sc1')
NDEF = len(deferred)
T_FLAG = NDEF + OPT.get('tflag', 4)
T_POLL0 = T_FLAG + OPT.get('tpoll', 4)
T_POLL1 = T_POLL0 + 3
lastr = None
for i, (r, st) in enumerate(deferred):
    if r != lastr:
        extra[i].append(f's_mov_b32 s{sT2}, {WS_P + r * 4096}')
        lastr = r
    extra[i].append(st)
items += [f'buffer_load_dwordx2 {v(XR + 2 * u, 2)}, v{vOUT + u}, {srd(SX)}, s6 offen' for u in range(5)]
extra2 = [[] for _ in range(64)]
for i, x in enumerate(items):
    extra2[1 + (i * (T_POLL1 - 1)) // len(items)].append(x)
extra[T_FLAG] += flag_addr(vT0) + [f'v_mov_b32 v{vT1}, 1'] + barrier(['pst', 'kvB', 'kvC'], False) + \
    [f'buffer_store_dword v{vT1}, v{vT0}, {srd(SWS)}, s{sT1} offen sc1']
ldB = f'buffer_load_dword v{vT3}, v{vT2}, {srd(SWS)}, s9 offen sc1'
extra[T_POLL0] = [f'v_lshlrev_b32 v{vT2}, 2, v{vL}', f's_lshl_b32 s9, s{sM}, 8', f's_add_u32 s9, s9, {WS_FLAG}', ldB] + extra[T_POLL0]
extra[T_POLL1] += poll('L_pb', ldB, vT3, '1')
items = []
for i in range(4):
    for nu in range(9):
        if nu % 4 == 0:
            items.append(f's_add_u32 s{sT0}, s8, {i * 36864 + nu * 1024}')
        items.append(f'buffer_load_dwordx4 {pfrag(i, nu)}, v{vDMA2}, {srd(SWS)}, s{sT0} offen offset:{1024 * (nu % 4)} sc1')
for i, x in enumerate(items):
    extra[T_POLL1 + 1 + (i * (60 - T_POLL1 - 1)) // len(items)].append(x)

for t in range(64):
    S = sbuf(t)
    ex = lambda b, n: [f'v_exp_f32 v{S + b + i}, v{S + b + i}' for i in range(n)]
    nxt = t + 1 < 64
    if OPT['stamp'] == 4 and t % 8 == 0 and t:
        E(stamp(f't{t}'))
    if t > 0:
        E(pv(t - 1, 1, 1))
    E(ex(0, 4))
    if nxt:
        E(qk2b(t + 1, sbuf(t + 1)))
    E(ex(4, 8))
    E(pv(t, 0, 0))
    E(extra2[t])
    E(ex(12, 6))
    E(pv(t, 0, 1))
    E(ex(18, 4))
    if nxt:
        E(qkm(t + 1, sbuf(t + 1), 0))
    E(ex(22, 4))
    E(pv(t, 1, 0))
    E(extra[t])
    E(ex(26, 4))
    if nxt:
        E(qkm(t + 1, sbuf(t + 1), 1))
    E(ex(30, 2))
    rds = []
    E(P('waittag', (set(), True)))
    if t + 3 < 64:
        rds += rd_k(t + 3)
    if t + 2 < 64:
        rds += rd_v(t + 2, 0) + rd_v(t + 2, 1)
    if t % 2 == 1 and t + 3 < 64:
        rds += rd_kr((t + 3) >> 1)
    E(rds)
E(pv(63, 1, 1))
E(stamp('att_end'))

vOA_, vOB_ = 58, 59
E(o_addr(vOA_, vOB_, vT0))
for hd, O in enumerate((OA, OB)):
    E(f'v_add_f32 v{hd}, abs(v{O}), abs(v{O + 1})')
    for j in range(2, 10):
        E(f'v_add_f32 v{hd}, v{hd}, abs(v{O + j})')
E(f'''v_add_f32 v2, v{OA + 10}, v{OB + 10}
v_add_f32 v3, v0, v1
v_min_f32 v0, v0, v1
v_fma_f32 v2, v2, 4.0, v3
v_cmp_nlt_f32 vcc, {f2u(2.0 ** -100)}, v0
s_mov_b64 s[12:13], vcc
v_cmp_ngt_f32 vcc, {f2u(2.0 ** 122 if not OPT['force_fb'] else -1.0)}, v2
s_or_b64 vcc, vcc, s[12:13]
s_cbranch_scc1 L_fb
L_norm:''')
OP = 24
for hd, O in enumerate((OA, OB)):
    E(f'v_rcp_f32 v{hd}, v{O + 10}')
for hd, O in enumerate((OA, OB)):
    for j in range(10):
        E(f'v_mul_f32 v{O + j}, v{hd}, v{O + j}')
    for j in range(5):
        d = OP + 4 * hd + j if j < 4 else OP + 8 + hd
        E(f'v_cvt_pk_bf16_f32 v{d}, v{O + 2 * j}, v{O + 2 * j + 1}')
        E(f'v_min_u32 v{d}, -2, v{d}')
    E(f'buffer_store_dwordx4 {v(OP + 4 * hd, 4)}, v{vOA_}, {srd(SWS)}, s{sT0} offen offset:{1024 * hd} sc1')
E(f'buffer_store_dwordx2 {v(OP + 8, 2)}, v{vOB_}, {srd(SWS)}, s{sT0} offen offset:2048 sc1')
E(stamp('o_pub'))

SEL = 60
FA = 68
OF = 192
vOL, vOLR, vRW, vRR = 58, 59, 45, 34
E(f'''v_and_b32 v0, 15, v{vL}
v_lshrrev_b32 v1, 4, v{vL}
v_lshlrev_b32 v{vOL}, 4, v0
v_lshl_add_u32 v{vOL}, v1, 9, v{vOL}
v_mul_u32_u24 v{vOLR}, 2304, v1
v_lshl_add_u32 v{vOLR}, v0, 3, v{vOLR}
s_mul_i32 s{sT0}, s{sW}, 18944
v_mul_u32_u24 v{vRW}, 592, v0
v_lshl_add_u32 v{vRW}, v1, 4, v{vRW}
v_add_u32 v{vRW}, s{sT0}, v{vRW}
s_add_u32 s15, s14, {2 * 2304}''')
E(sel_setup(SEL, 0, 1))
oloads = []
for i in range(4):
    for tt in range(2):
        oloads.append(f'buffer_load_dwordx4 {v(OF + 8 * i + 4 * tt, 4)}, v{vOL}, {srd(SWS)}, s{14 + (i >> 1)} offen offset:{(i & 1) * 2304 + tt * 256} sc1')
for tt in range(2):
    oloads.append(f'buffer_load_dwordx2 {v(OF + 32 + 2 * tt, 2)}, v{vOLR}, {srd(SWS)}, s14 offen offset:{2048 + tt * 128} sc1')
misc = [f'v_lshl_or_b32 v0, s{sW}, 6, v{vL}']
for u in range(5):
    misc += [f'v_add_u32 v1, {256 * u}, v0', 'v_mul_u32_u24 v2, 1821, v1', 'v_lshrrev_b32 v2, 16, v2', 'v_add_u32 v2, v2, v1',
             f'v_lshlrev_b32 v{vRR + u}, 4, v2']
cnt = 0
for i in range(4):
    for nu in range(9):
        for tt in range(2):
            acc = FA + 8 * nu + 4 * tt
            E(mf(acc, v(SEL + 2 * (tt ^ ((i & ROT) >> 1)), 4), pfrag(i, nu), i == 0))
            if cnt < len(misc):
                E(misc[cnt])
            if 40 <= cnt < 50:
                E(oloads[cnt - 40])
            cnt += 1
E('s_barrier')
chk = [f'v_max3_u32 v0, v{OF}, v{OF + 1}, v{OF + 2}']
for i in range(3, 35, 2):
    chk.append(f'v_max3_u32 v0, v0, v{OF + i}, v{OF + i + 1}')
chk += [f'v_max_u32 v0, v0, v{OF + 35}', 'v_cmp_eq_u32 vcc, -1, v0']
E(chk)
E(['s_cmp_eq_u64 vcc, 0', 's_cbranch_scc0 L_pc_slow', 'L_pc_ok:'])
side.append(f'''L_pc_slow:
    s_mov_b32 s{sCNT}, 0
L_pc_loop:
    ''' + '\n    '.join(oloads) + '''
    s_waitcnt vmcnt(0)
    ''' + '\n    '.join(chk) + f'''
    s_add_u32 s{sCNT}, s{sCNT}, 1
    s_nop 4
    s_cmp_eq_u64 vcc, 0
    s_cbranch_scc1 L_pc_ok
    s_cmp_lt_u32 s{sCNT}, 0x4000
    s_cbranch_scc1 L_pc_loop
    s_branch L_pc_ok
''')
E(stamp('o_got'))


def red_write(nu, tt):
    return f'ds_write_b128 v{vRW}, {v(FA + 8 * nu + 4 * tt, 4)} offset:{tt * 16 * 592 + nu * 64}'


def rem_mf(k):
    nu, tt = k >> 1, k & 1
    acc = FA + 4 * k
    return f'v_mfma_f32_16x16x16_bf16 {v(acc, 4)}, {a(144 + 2 * nu, 2)}, {v(OF + 32 + 2 * tt, 2)}, {v(acc, 4)}'


pend = []
E([rem_mf(k) for k in range(7)])
for nu in range(9):
    for tt in range(2):
        acc = FA + 8 * nu + 4 * tt
        for i in range(4):
            E(mf(acc, a(4 * (4 * nu + i), 4), v(OF + 8 * i + 4 * tt, 4), False))
        if 2 * nu + tt + 7 < 18:
            E(rem_mf(2 * nu + tt + 7))
        pend.append((nu, tt))
        if len(pend) > 2:
            E(red_write(*pend.pop(0)))
for x in pend:
    E(red_write(*x))
E(barrier())
RD = 140
for u in range(5):
    for src in range(4):
        E(f'ds_read_b128 {v(RD + 16 * u + 4 * src, 4)}, v{vRR + u} offset:{src * 18944}')
for u in range(5):
    R = RD + 16 * u
    E([f'v_lshlrev_b32 v0, 16, v{XR + 2 * u}', f'v_and_b32 v1, 0xffff0000, v{XR + 2 * u}',
       f'v_lshlrev_b32 v2, 16, v{XR + 2 * u + 1}', f'v_and_b32 v3, 0xffff0000, v{XR + 2 * u + 1}'])
    for src in range(4):
        E([f'v_pk_add_f32 v[0:1], v[0:1], {v(R + 4 * src, 2)}', f'v_pk_add_f32 v[2:3], v[2:3], {v(R + 4 * src + 2, 2)}'])
    E([f'v_cvt_pk_bf16_f32 v{R}, v0, v1', f'v_cvt_pk_bf16_f32 v{R + 1}, v2, v3',
       f'buffer_store_dwordx2 {v(R, 2)}, v{vOUT + u}, {srd(SA)}, s6 offen'])
if OPT['stamp']:
    E('s_waitcnt vmcnt(0)')
    E(stamp('end'))
    E(f'''s_lshl_b32 s{sT0}, s{sM}, 4
s_add_u32 s{sT0}, s{sT0}, s{sS}
s_lshl_b32 s{sT0}, s{sT0}, 2
s_add_u32 s{sT0}, s{sT0}, s{sW}
s_lshl_b32 s{sT0}, s{sT0}, 8
s_add_u32 s{sT0}, s{sT0}, {WS_STAMP2}
v_lshlrev_b32 v0, 2, v{vL}
buffer_store_dword v{vSTAMP}, v0, {srd(SWS)}, s{sT0} offen''')
E('s_endpgm')
if 'drop' in OPT:
    import re
    n0_ = len(p.ins)
    p.ins = [i for i in p.ins if not re.search(OPT['drop'], i.text)]
    print('dropped', n0_ - len(p.ins))
if 'sub' in OPT:
    import re
    pat, rep_ = OPT['sub'].split('->')
    p.ins = [Ins(re.sub(pat, rep_, i.text), i.tag) if (not i.pseudo and re.search(pat, i.text)) else i for i in p.ins]
main = p.finalize()

q = Prog()
F = q.e
fK, fR, fV, fD = 60, 61, 62, 66
back = (L_KV0 - 13 * REC) & 0xffffffff


def fb_addr():
    out = [f'v_add_u32 v{fK}, {back}, v{vKB}', f'v_add_u32 v{fR}, {back}, v{vKRB}',
           f'v_add_u32 v2, v{vDL}, v{vDL + 1}']
    out += [f'v_sub_u32 v{fV + f}, v{vVB + f}, v2' for f in range(4)]
    out += [f's_mov_b32 s{sCNT}, 0']
    return out


def fb_next(label):
    return [f's_add_u32 s{sCNT}, s{sCNT}, 1', f's_cmp_eq_u32 s{sCNT}, 10',
            f's_mov_b32 s12, {REC}', f's_cmov_b32 s12, {(-(L_KV0 + 9 * REC)) & 0xffffffff}',
            f'v_add_u32 v{fK}, s12, v{fK}', f'v_add_u32 v{fR}, s12, v{fR}',
            f'v_mul_lo_u32 v2, v{fD}, s12'] + [f'v_add_u32 v{fV + f}, v2, v{fV + f}' for f in range(4)] + \
           [f's_cmp_lt_u32 s{sCNT}, 32', 's_nop 15', f's_cbranch_scc1 {label}']


def fb_qk(tile):
    return [f'ds_read_b128 {v(KM, 4)}, v{fK} offset:{1024 * tile}', f'ds_read_b128 {v(KRM, 4)}, v{fR}',
            f'v_mfma_f32_32x32x4_2b_bf16 {v(S0, 32)}, {v(KRM + 2 * tile, 2)}, {v(QR, 2)}, 0',
            f'v_mfma_f32_32x32x16_bf16 {v(S0, 16)}, {v(KM, 4)}, {v(QA, 4)}, {v(S0, 16)}',
            f'v_mfma_f32_32x32x16_bf16 {v(S0 + 16, 16)}, {v(KM, 4)}, {v(QB, 4)}, {v(S0 + 16, 16)}']


F('L_fb:')
F(['s_nop 15', f'v_min_u32 v{fD}, 1, v{vDL + 1}', f'v_mov_b32 v{QR + 1}, 0', 'v_mov_b32 v0, 0xff800000', 'v_mov_b32 v1, 0xff800000'])
F(fb_addr())
F('L_fb1:')
for tile in range(2):
    F(fb_qk(tile))
    for hd in range(2):
        for i in range(0, 16, 2):
            F(f'v_max3_f32 v{hd}, v{hd}, v{S0 + 16 * hd + i}, v{S0 + 16 * hd + i + 1}')
F(fb_next('L_fb1'))
F(set_m(0, 1, 0.0))
F([f'v_mov_b32 v{OA + i}, 0' for i in range(32)])
F(fb_addr())
F('L_fb2:')
for tile in range(2):
    F(fb_qk(tile))
    F([f'ds_read_b128 {v(VF + 4 * i, 4)}, v{fV + 2 * tile + i}' for i in range(2)])
    F([f'v_exp_f32 v{S0 + i}, v{S0 + i}' for i in range(32)])
    for hd in range(2):
        for i in range(2):
            F(f'v_smfmac_f32_32x32x32_bf16 {v(OB if hd else OA, 16)}, {v(VF + 4 * i, 4)}, {v(S0 + 16 * hd + 8 * i, 8)}, v{vIDX}')
F(fb_next('L_fb2'))
F(['s_nop 15', 's_branch L_norm'])
fb = q.finalize(False)

hdr = open('cdna_kernels/' + NAME + '.s.ref').read().split('; Override launch')[0]
text = hdr + f'''; Generated by dev/gen.py: one persistent workgroup per CU (128 tokens x 1/16 of the FFN width x 2 heads).
; @launch grid=(256,1,1) block=(256,1,1) lds=163840
.amdgcn_target "amdgcn-amd-amdhsa--gfx950"
.text
.globl {NAME}_kernel
.p2align 8
.type {NAME}_kernel,@function
{NAME}_kernel:
{main}
{''.join(side)}
{fb}
L_end:
    s_endpgm
.section .rodata,"a"
.p2align 6
.amdhsa_kernel {NAME}_kernel
  .amdhsa_next_free_vgpr 512
  .amdhsa_next_free_sgpr 102
  .amdhsa_accum_offset 256
  .amdhsa_group_segment_fixed_size 0
  .amdhsa_kernarg_size 96
  .amdhsa_user_sgpr_count 2
  .amdhsa_user_sgpr_kernarg_segment_ptr 1
  .amdhsa_system_sgpr_workgroup_id_x 1
.end_amdhsa_kernel
'''
open(sys.argv[1], 'w').write(text)
open(sys.argv[1] + '.stamps', 'w').write(' '.join(STAMPS))
print('bytes of source', len(text))
```

```python
import sys, struct, math
from asmlib import Prog, Ins, cost

NAME = 'parallel_sum__grouped_kv_mqa__geglu_ffn__prompt'
OPT = dict(stamp=0, touch=7, force_fb=0, shift=80.0)
for a in sys.argv[2:]:
    k, v = a.split('=', 1)
    OPT[k] = v if k in ('drop', 'sub', 'diag') else float(v) if '.' in v else int(v)


ROT = OPT.get('rot', 0)


def f2u(x):
    return '0x%08x' % struct.unpack('<I', struct.pack('<f', x))[0]


WS_KV = 0
WS_FLAG = 0x30000
WS_STAMP = 0x38000
WS_WOT = 0x40000
WS_O = 0x100000
WS_WQT = 0x340000
WS_P = 0x440000
WS_STAMP2 = 0x3000000
WS_SIZE = 0x10000000
OOB = 0x40000000
REC = 4992

L_SS = 49152
L_QIMG = 98304
L_KVS = 147456
L_STASH = 153600
L_STATS = 162816
L_DSLOT = 36864
L_KV0 = 110592
L_OOR = 0x28000

SX, SW, SD, SWS, SA, SB = 28, 32, 36, 40, 44, 48
sM, sS, sW, sI1, sT0, sT1, sT2, sT3, sMB, sCNT = 52, 53, 54, 55, 56, 57, 58, 59, 60, 61
sMKV = 62
sJQ, sJO = 16, 17
TAB = 64
sQM = 4
sMK4, sMK5 = 100, 20


def srd(r):
    return f's[{r}:{r + 3}]'


vT0, vT1, vT2, vT3 = 0, 1, 2, 3
vDMA, vRB0, vRB1, vTCH = 4, 5, 6, 7
K0, K1, KR = 8, 12, 16
vDUM, vDMA2, vL, vSTAMP = 20, 21, 22, 23
WF = 24
XV = 48
H = 80
ACC0, ACC1 = 128, 192
XLG = [120, 156, 192, 80]
PRE = 228


def v(r, n=1):
    return f'v{r}' if n == 1 else f'v[{r}:{r + n - 1}]'


def a(r, n=1):
    return f'a{r}' if n == 1 else f'a[{r}:{r + n - 1}]'


def xfrag(kap, u):
    i = 4 * kap + u
    return a(4 * i, 4) if i < 64 else v(XV + 4 * (i - 64), 4)


p = Prog()
P = Prog.P
E = p.e
_stamp = [0]
STAMPS = []


def T(text, tag=None, opt=False):
    return Ins(text, tag, opt)


def stamp(name):
    if 'diag' in OPT:
        names = ['start'] + OPT['diag'].split(',')
        out = []
        for i, n_ in enumerate(names):
            if n_ == name:
                out += ['s_memrealtime s[2:3]', 's_waitcnt lgkmcnt(0)', f'v_writelane_b32 v{vSTAMP}, s2, {i}']
        return out
    if not OPT['stamp']:
        return []
    i = _stamp[0]
    _stamp[0] += 1
    STAMPS.append(name)
    return ['s_memtime s[2:3]', 's_waitcnt lgkmcnt(0)', f'v_writelane_b32 v{vSTAMP}, s2, {i}',
            's_memrealtime s[2:3]', 's_waitcnt lgkmcnt(0)', f'v_writelane_b32 v{vSTAMP}, s2, {32 + i}']


def mk_srd(r, ptr, size):
    return [f's_mov_b32 s{r}, s{ptr}', f's_mov_b32 s{r + 1}, s{ptr + 1}', f's_mov_b32 s{r + 2}, {size}',
            f's_mov_b32 s{r + 3}, 0x20000']


def barrier(vtags=(), lds=True):
    return [P('waittag', (set(vtags), lds)), 's_barrier']


E(f'''
s_cmp_ge_u32 s2, 256
s_cbranch_scc1 L_end
s_load_dwordx16 s[4:19], s[0:1], 0
s_load_dwordx8 s[20:27], s[0:1], 64
v_lshrrev_b32 v1, 6, v0
v_and_b32 v{vL}, 63, v0
s_getpc_b64 s[{sT0}:{sT1}]
L_pc:
v_readfirstlane_b32 s{sW}, v1
s_lshr_b32 s{sT2}, s2, 3
''')
E(f'''
v_lshrrev_b32 v2, 3, v0
s_lshl_b32 s{sT3}, s{sT2}, 5
v_add_u32 v2, s{sT3}, v2
v_min_u32 v2, (L_end-L_pc)/128, v2
v_lshlrev_b32 v2, 7, v2
global_load_dword v{vDUM}, v2, s[{sT0}:{sT1}]
''')
if OPT.get('stlb', 0):
    E([f's_load_dword s{TAB + i}, s[{sT0}:{sT1}], {4096 * (i + 1)}' for i in range(16)])
E(f'''
s_and_b32 s{sM}, s2, 1
s_lshl_b32 s{sM}, s{sM}, 3
s_and_b32 s{sT3}, s{sT2}, 7
s_add_u32 s{sM}, s{sM}, s{sT3}
s_bfe_u32 s{sS}, s2, 0x20001
s_lshl_b32 s{sS}, s{sS}, 2
s_lshr_b32 s{sT2}, s{sT2}, 3
s_add_u32 s{sS}, s{sS}, s{sT2}
s_mov_b32 s{sCNT}, s2
s_and_b32 s{sI1}, s{sS}, {ROT}
s_lshr_b32 s{sI1}, s{sI1}, 1
s_lshl_b32 s{sMB}, s{sM}, 2
s_add_u32 s{sMB}, s{sMB}, s{sW}
v_lshrrev_b32 v1, 3, v{vL}
v_and_b32 v3, 7, v{vL}
v_mul_u32_u24 v0, 1152, v1
v_lshl_add_u32 v0, v3, 4, v0
''')
if OPT['stamp']:
    E(f'v_mov_b32 v{vSTAMP}, 0')
E(mk_srd(SX, 4, 2359296))
E(stamp('start'))
XSO = [14, 15, 0, 1]
vXL = vDMA2
E(f'''
v_mov_b32 v{vXL}, v0
s_and_b32 s{sT2}, s{sS}, {ROT}
s_lshl_b32 s{sT1}, s{sMB}, 2
''')
for g in range(4):
    E(f'''
s_xor_b32 s{sT0}, s{sT2}, {g}
s_add_u32 s{sT0}, s{sT0}, s{sT1}
s_mul_i32 s{XSO[g]}, s{sT0}, 9216
''')
    if g == 0:
        xl = [f'buffer_load_dwordx4 {v(XLG[g_] + 4 * c, 4)}, v{vXL}, {srd(SX)}, s{XSO[g_]} offen offset:{128 * c}'
              for g_ in range(4) for c in range(9)]
        E(xl[:4])
NX0 = OPT.get('nx0', 18)
pre_at = len(p.ins)
E(f'''
s_cmp_ge_u32 s{sW}, 2
s_cselect_b32 s{SW}, s18, s16
s_cselect_b32 s{SW + 1}, s19, s17
s_mov_b32 s{SW + 2}, 5308416
s_mov_b32 s{SW + 3}, 0x20000
''')
E(mk_srd(SD, 20, 5308416))
E(mk_srd(SWS, 26, WS_SIZE))
E(mk_srd(SA, 12, 663552))
E(mk_srd(SB, 24, 256))
for st in range(9):
    for j in range(4):
        E(f's_mov_b32 s{TAB + 4 * st + j}, {(64 * st + 16 * j) * 9216 - 1024 * j}')
E(f'''
s_and_b32 s{sT0}, s{sW}, 1
s_mul_i32 s{sT1}, s{sS}, 576
s_and_b32 s{sT2}, s{sS}, 1
s_lshl_b32 s{sT3}, s{sT2}, 6
s_add_u32 s{sT3}, s{sT3}, s{sT1}
v_bfe_u32 v2, v{vL}, 4, 1
v_lshl_or_b32 v2, s{sT0}, 1, v2
v_lshlrev_b32 v2, 1, v2
v_xor_b32 v2, v2, v3
v_lshlrev_b32 v2, 4, v2
v_lshl_add_u32 v{vDMA}, s{sT0}, 3, v1
v_mul_u32_u24 v{vDMA}, 9216, v{vDMA}
v_add3_u32 v{vDMA}, v{vDMA}, v2, s{sT3}
''')
sTB, sTW = 13, 3
E(f'''
s_and_b32 s{sT1}, s{sM}, 7
s_lshl_b32 s{sT2}, s{sT1}, 1
s_add_u32 s{sT2}, s{sT2}, s{sT0}
s_mul_i32 s{sT2}, s{sT2}, {12 * 9216}
s_add_u32 s{sTB}, s{sT2}, s{sT3}
v_min_u32 v{vTCH}, 11, v{vL}
v_mul_u32_u24 v{vTCH}, 9216, v{vTCH}
''')


def touch_w(n):
    if not OPT['touch'] & (1 if n < 3 else 4):
        return []
    return [[f's_add_u32 s5, s{sTB}, {(n % 3) * 192 * 9216}'],
            [f'buffer_load_dword v{vDUM}, v{vTCH}, {srd(SW)}, s5 offen offset:{128 * (n // 3)}']]


sWL = 19
E(f's_lshl_b32 s{sWL}, s{sW}, 12')


def dma_full(n, rnd_stage0, tag):
    out = []
    base = ((n + 2) % 3) * L_SS
    for q in range(3):
        st = rnd_stage0 + q
        out.append([f's_add_u32 m0, s{sWL}, {base + q * 16384}'])
        for j in range(4):
            out.append([T(f'buffer_load_dwordx4 v{vDMA}, {srd(SW)}, s{TAB + 4 * st + j} offen offset:{1024 * j} lds', tag)])
    return out


def flat(L):
    return [x for y in L for x in y]


vXW0, vXW1, vXR = PRE, PRE + 1, 116
E(f'''
s_mul_i32 s{sT0}, s{sW}, 18432
s_add_u32 s{sT0}, s{sT0}, 24576
s_and_b32 s{sT1}, s{sS}, {ROT & 1}
v_xor_b32 v0, v1, v3
v_lshl_or_b32 v0, s{sT1}, 3, v0
v_lshlrev_b32 v0, 4, v0
v_lshl_add_u32 v0, v3, 8, v0
v_add_u32 v{vXW0}, s{sT0}, v0
v_xor_b32 v{vXW1}, 128, v{vXW0}
v_lshrrev_b32 v2, 4, v{vL}
v_xor_b32 v0, v2, v{vL}
v_lshlrev_b32 v0, 4, v0
v_add_u32 v{vXR}, s{sT0}, v0
v_xor_b32 v{vXR + 1}, 64, v{vXR}
s_xor_b32 s{sT1}, s{sW}, 1
s_mul_i32 s{sT1}, s{sT1}, 18432
s_add_u32 s{sT1}, s{sT1}, 24576
v_add_u32 v{vXR + 2}, s{sT1}, v0
v_xor_b32 v{vXR + 3}, 64, v{vXR + 2}
''')
vSW0, vSW1 = PRE + 8, PRE + 9
E(f'''
s_and_b32 s{sT1}, s{sS}, {ROT & 1}
s_lshl_b32 s{sT0}, s{sW}, 7
s_add_u32 s{sT0}, s{sT0}, {L_STATS}
v_lshl_or_b32 v0, s{sT1}, 3, v1
v_lshl_add_u32 v{vSW0}, v0, 2, s{sT0}
v_xor_b32 v{vSW1}, 32, v{vSW0}
''')
E(f'''
s_and_b32 s{sT0}, s{sW}, 1
v_bfe_u32 v0, v{vL}, 4, 1
v_bfe_u32 v2, v{vL}, 3, 2
v_lshlrev_b32 v{WF}, 1, s{sT0}
v_xor_b32 v2, v2, v{WF}
v_lshlrev_b32 v2, 5, v2
v_lshl_add_u32 v2, v0, 12, v2
v_lshrrev_b32 v0, 5, v{vL}
v_lshl_add_u32 v2, v0, 10, v2
v_bfe_u32 v0, v{vL}, 2, 2
v_lshl_add_u32 v2, v0, 7, v2
v_and_b32 v0, 3, v{vL}
v_lshl_add_u32 v2, v0, 3, v2
v_add_u32 v{vRB0}, {2 * L_SS}, v2
v_xor_b32 v{vRB1}, 32, v{vRB0}
''')
C0 = -2.0 * math.log2(math.e) * math.sqrt(2.0 / math.pi)
QS = 18 ** -0.5 * math.log2(math.e)
vGA, vGS = PRE + 4, PRE + 6
r16, g16 = XV, XV + 1
E(f'''
v_and_b32 v{r16}, 15, v{vL}
v_lshrrev_b32 v{g16}, 4, v{vL}
s_lshr_b32 s18, s{sCNT}, 3
s_lshl_b32 s18, s18, 2
s_add_u32 s18, s18, s{sW}
s_and_b32 s{sCNT}, s{sCNT}, 7
s_min_u32 s{sT0}, s18, 107
s_mul_i32 s{sT1}, s{sCNT}, 108
s_add_u32 s{sT0}, s{sT0}, s{sT1}
s_mul_i32 s{sT2}, s{sT0}, 1366
s_lshr_b32 s{sT2}, s{sT2}, 16
s_mul_i32 s{sT1}, s{sT2}, 48
s_sub_u32 s{sT0}, s{sT0}, s{sT1}
s_mul_i32 s{sT1}, s{sT0}, 86
s_lshr_b32 s{sT1}, s{sT1}, 8
s_mul_i32 s{sT3}, s{sT1}, 3
s_sub_u32 s{sT0}, s{sT0}, s{sT3}
s_mul_i32 s{sJQ}, s{sT1}, 18
s_add_u32 s{sJQ}, s{sJQ}, s{sT2}
s_mul_i32 s{sJQ}, s{sJQ}, 3
s_add_u32 s{sJQ}, s{sJQ}, s{sT0}
s_lshl_b32 s{sJQ}, s{sJQ}, 10
s_add_u32 s{sJQ}, s{sJQ}, {WS_WQT}
s_cmp_lt_u32 s18, 108
s_cselect_b32 s{sJQ}, s{sJQ}, {OOB}
s_lshl_b32 s{sT2}, s{sT2}, 5
v_lshrrev_b32 v0, 1, v{vL}
v_add_u32 v0, s{sT2}, v0
s_lshr_b32 s{sT2}, 0x2c, s{sT1}
s_and_b32 s{sT2}, s{sT2}, 1
s_cselect_b32 s8, s10, s8
s_cselect_b32 s9, s11, s9
s_and_b32 s{sT2}, s{sT1}, 1
s_lshl_b32 s{sT2}, s{sT2}, 4
s_cmp_ge_u32 s{sT1}, 4
s_cselect_b32 s{sT2}, 20, s{sT2}
s_mul_i32 s{sT1}, s{sT1}, 72
s_mul_i32 s{sT3}, s{sT0}, 40
s_cmp_eq_u32 s{sT0}, 2
s_cselect_b32 s{sT3}, 32, s{sT3}
s_cselect_b32 s11, 0, 1
s_add_u32 s{sT1}, s{sT1}, s{sT3}
v_and_b32 v{WF + 6}, 1, v{vL}
v_lshl_add_u32 v2, v{WF + 6}, 4, s{sT1}
v_cmp_lt_u32 vcc, s11, v{WF + 6}
v_mov_b32 v{WF}, s{sT2}
v_mov_b32 v{WF + 1}, 1152
v_mov_b32 v{WF + 2}, s6
v_mov_b32 v{WF + 3}, s7
v_mov_b32 v{WF + 4}, s8
v_mov_b32 v{WF + 5}, s9
v_cndmask_b32 v2, v2, v{WF}, vcc
v_cndmask_b32 v{WF + 1}, v{WF + 1}, 36, vcc
v_cndmask_b32 v{vGA}, v{WF + 2}, v{WF + 4}, vcc
v_cndmask_b32 v{vGA + 1}, v{WF + 3}, v{WF + 5}, vcc
v_mad_u32_u24 v{WF}, v0, v{WF + 1}, v2
v_mov_b32 v{WF + 1}, 0
v_lshl_add_u64 {v(vGA, 2)}, {v(WF, 2)}, 0, {v(vGA, 2)}
''')
vGW = PRE + 3
E(f'''
s_sub_u32 s12, 127, s18
s_min_u32 s18, s12, 81
s_cmp_ge_u32 s18, 36
s_cselect_b32 s{sT0}, 1, 0
s_cselect_b32 s{sT1}, 36, 0
s_sub_u32 s{sT1}, s18, s{sT1}
s_lshl_b32 s{sT2}, s{sCNT}, 1
s_add_u32 s{sT0}, s{sT0}, s{sT2}
s_mul_i32 s4, s{sT0}, {36 * 1152}
s_lshl_b32 s{sT2}, s{sT1}, 5
s_add_u32 s4, s4, s{sT2}
s_mul_i32 s{sT2}, s{sT1}, 57
s_lshr_b32 s{sT2}, s{sT2}, 9
s_mul_i32 s{sT2}, s{sT2}, 128
s_lshl_b32 s{sT1}, s{sT1}, 2
s_add_u32 s{sT1}, s{sT1}, s{sT2}
s_and_b32 s{sT0}, s{sT0}, 3
s_add_u32 s{sJO}, s{sT1}, s{sT0}
s_and_b32 s{sT0}, s{sCNT}, 1
s_mul_i32 s{sT0}, s{sT0}, 10
s_add_u32 s{sT0}, s{sT0}, s18
s_sub_u32 s{sT0}, s{sT0}, 72
s_mul_i32 s{sT1}, s{sT0}, 52
s_lshr_b32 s{sT1}, s{sT1}, 8
s_mul_i32 s{sT2}, s{sT1}, 159
s_add_u32 s{sT2}, s{sT2}, s{sT0}
s_add_u32 s{sT2}, s{sT2}, 36
s_lshl_b32 s{sT0}, s{sT0}, 6
s_lshl_b32 s{sT1}, s{sT1}, 5
s_sub_u32 s{sT0}, s{sT0}, s{sT1}
s_lshr_b32 s{sT3}, s{sCNT}, 1
s_mul_i32 s{sT1}, s{sT3}, {144 * 1152}
s_add_u32 s{sT0}, s{sT0}, s{sT1}
s_add_u32 s{sT0}, s{sT0}, {16 * 1152}
s_mov_b32 s10, {72 * 1152}
s_mov_b32 s11, {36 * 1152}
s_mov_b32 s5, {18 * 1152}
s_cmp_lt_u32 s18, 72
s_cselect_b32 s4, s4, s{sT0}
s_cselect_b32 s{sJO}, s{sJO}, s{sT2}
s_cmov_b32 s10, {18 * 1152}
s_cmov_b32 s11, {4 * 1152}
s_cmov_b32 s5, {2 * 1152}
s_cselect_b32 s6, {8 * 1152}, 32
s_mul_i32 s{sT3}, s{sT3}, 41
s_add_u32 s{sJO}, s{sJO}, s{sT3}
s_lshl_b32 s{sJO}, s{sJO}, 10
s_add_u32 s{sJO}, s{sJO}, {WS_WOT}
s_cmp_lt_u32 s12, 82
s_cselect_b32 s{sJO}, s{sJO}, {OOB}
v_lshl_add_u32 v0, v{WF + 6}, 4, s4
v_lshrrev_b32 v2, 5, v{vL}
v_mad_u32_u24 v0, v2, s10, v0
v_bfe_u32 v2, v{vL}, 4, 1
v_mad_u32_u24 v0, v2, s11, v0
v_bfe_u32 v2, v{vL}, 3, 1
v_mad_u32_u24 v0, v2, s6, v0
v_bfe_u32 v2, v{vL}, 2, 1
v_mad_u32_u24 v0, v2, s5, v0
v_bfe_u32 v2, v{vL}, 1, 1
v_mul_u32_u24 v2, 1152, v2
v_add_u32 v{vGW}, v0, v2
s_mul_i32 s{sT0}, s{sW}, 2304
s_add_u32 s8, s{sT0}, {L_STASH}
s_lshl_b32 s18, s12, 2
s_lshl_b32 s12, s{sW}, 10
s_add_u32 s12, s12, {L_KVS}
v_lshlrev_b32 v0, 3, v{r16}
v_lshl_add_u32 v0, v{g16}, 8, v0
v_add_u32 v{vGS}, s12, v0
v_add_u32 v{vGS + 1}, s8, v0
''')


def sel_setup(SEL, r, g):
    return f"""v_lshrrev_b32 v2, 2, v{r}
v_and_b32 v3, 1, v{r}
v_cmp_eq_u32 s[10:11], v{g}, v2
v_lshlrev_b32 v3, 4, v3
v_mov_b32 v{SEL + 2}, 0x3f80
v_lshlrev_b32 v3, v3, v{SEL + 2}
v_and_b32 v2, 2, v{r}
v_cmp_eq_u32 vcc, 0, v2
v_cndmask_b32 v3, 0, v3, s[10:11]
v_mov_b32 v{SEL + 2}, 0
v_mov_b32 v{SEL + 3}, 0
v_cndmask_b32 v{SEL}, 0, v3, vcc
v_cndmask_b32 v{SEL + 1}, v3, v{SEL + 2}, vcc
v_mov_b32 v{SEL + 4}, v{SEL}
v_mov_b32 v{SEL + 5}, v{SEL + 1}""".split('\n')


LSEL, LONE = 8, 14
E(sel_setup(LSEL, r16, g16))
E('v_mov_b32 v2, 0x3f803f80')
E([f'v_cndmask_b32 v{LONE + i}, 0, v2, s[10:11]' for i in range(4)])
body = p.ins[pre_at:]
del p.ins[pre_at:]
k = 4
for i, x in enumerate(body):
    E(x)
    while k < NX0 and (k - 4) * len(body) < (i + 1) * (NX0 - 4):
        E(xl[k])
        k += 1


def red8(r):
    return [f'v_add_f32_dpp v{r}, v{r}, v{r} quad_perm:[1,0,3,2] row_mask:0xf bank_mask:0xf',
            f'v_add_f32_dpp v{r}, v{r}, v{r} quad_perm:[2,3,0,1] row_mask:0xf bank_mask:0xf',
            f'v_add_f32_dpp v{r}, v{r}, v{r} row_half_mirror row_mask:0xf bank_mask:0xf']


LS, LN_, LT = WF, WF + 4, WF + 8
vDLT = [18, 19, PRE + 10, PRE + 11]


def mf(acc, A, B, first):
    return f'v_mfma_f32_16x16x32_bf16 {v(acc, 4)}, {A}, {B}, {0 if first else v(acc, 4)}'


def ln_sum(g):
    return [mf(LS, v(LONE, 4), v(XLG[g] + 4 * c, 4), c == 0) for c in range(9)]


def ln_mean(g):
    return red8(LS) + [f'v_mul_f32 v0, {f2u(-1 / 576)}, v{LS}', f'v_cvt_pk_bf16_f32 v1, v0, v0'] + \
        [f'v_and_b32 v{LN_ + i}, 0xffff0000, v1' for i in range(4)] + [f'v_sub_f32 v{vDLT[g]}, v0, v{LN_}']


def ln_sq(g, c, acc):
    X = XLG[g] + 4 * c
    return [f'v_dot2c_f32_bf16 v{acc}, v{X + d}, v{X + d}' for d in range(4)]


def ln_den(g, acc):
    t = vDLT[g]
    return red8(acc) + f"""v_mul_f32 v{t}, v{t}, v{t}
v_mul_f32 v{acc}, {f2u(1 / 576)}, v{acc}
v_sub_f32 v{acc}, v{acc}, v{t}
v_max_f32 v{acc}, 0, v{acc}
v_cvt_pk_bf16_f32 v{acc}, v{acc}, v{acc}
v_and_b32 v{acc}, 0xffff0000, v{acc}
v_add_f32 v{acc}, {f2u(1e-5)}, v{acc}
v_cvt_pk_bf16_f32 v{acc}, v{acc}, v{acc}
v_and_b32 v{acc}, 0xffff0000, v{acc}
v_sqrt_f32 v{acc}, v{acc}
v_cvt_pk_bf16_f32 v{acc}, v{acc}, v{acc}
v_and_b32 v{acc}, 0xffff0000, v{acc}
ds_write_b32 v{vSW1 if g & 1 else vSW0}, v{acc} offset:{64 * (g >> 1)}""".split('\n')


def merge(A, B):
    out = []
    k = 0
    for i, x in enumerate(A):
        out.append(x)
        while k < len(B) and k * len(A) < (i + 1) * len(B):
            out.append(B[k])
            k += 1
    return out + B[k:]


def ln_centre(g, hold):
    X = XLG[g]
    wr = vXW1 if g & 1 else vXW0
    cm = lambda c: [f'v_mfma_f32_16x16x32_bf16 {v(LT + 8 * (c & 1) + 4 * h_, 4)}, {v(LSEL + 2 * h_, 4)}, {v(X + 4 * c, 4)}, {v(LN_, 4)}'
                    for h_ in range(2)]
    wrt = lambda c: f'ds_write_b128 v{wr}, {v(X + 4 * c, 4)} offset:{2048 * c}'
    L = cm(0)
    for c in range(9):
        n_ = cm(c + 1) if c < 8 else []
        tt = LT + 8 * (c & 1)
        L += n_[:1]
        if c > 0:
            if c - 1 > hold:
                L.append(wrt(c - 1))
            elif c - 1 == hold:
                L.append(barrier())
                L += [wrt(z) for z in range(c)]
        L += n_[1:]
        L += [f'v_cvt_pk_bf16_f32 v{X + 4 * c + d}, v{tt + 2 * d}, v{tt + 2 * d + 1}' for d in range(4)]
    L.append(wrt(8))
    return L


def readback(u0):
    out = []
    for kap in range(18):
        for who in range(2):
            out.append(T(f'ds_read_b128 {xfrag(kap, u0 + 2 * who)}, v{vXR + 2 * who + (kap & 1)} offset:{1024 * kap}', 'xrb'))
    return out


E(stamp('pre_done'))
NX1 = OPT.get('nx1', 30)
ND0, ND1 = OPT.get('nd0', 0), OPT.get('nd1', 15)
d0 = dma_full(0, 0, 'n0') + dma_full(1, 3, 'n1')[:5]
gl = [['s_mov_b32 m0, s12'], [T(f'global_load_lds_dwordx4 {v(vGA, 2)}, off', 'gth')],
      ['s_mov_b32 m0, s8'], [T(f'buffer_load_dwordx4 v{vGW}, {srd(SA)}, 0 offen lds', 'gth')]]
rb0 = readback(0)


def sq_all(g, acc):
    return [f'v_mov_b32 v{acc}, 0'] + flat([ln_sq(g, c, acc) for c in range(9)])


st3 = lambda n_: stamp(n_) if OPT['stamp'] == 3 else []
E(merge(ln_sum(0) + ln_mean(0) + st3('m0') + ln_centre(0, -1) + st3('c0') + sq_all(0, 3) + st3('q0') + merge(ln_den(0, 3), ln_sum(1)), touch_w(0) + xl[NX0:NX1]))
E(merge(ln_mean(1) + st3('m1') + ln_centre(1, -1) + st3('c1') + sq_all(1, 3)[:12], xl[NX1:] + touch_w(1) + d0[:ND0]))
E(barrier())
E(st3('b1'))
E(merge(sq_all(1, 3)[12:] + merge(ln_den(1, 3), ln_sum(2)) + ln_mean(2), rb0))
E(st3('m2'))
E(merge(ln_centre(2, 0) + st3('c2') + sq_all(2, 3) + merge(ln_den(2, 3), ln_sum(3)), touch_w(2) + d0[ND0:ND1]))
E(merge(ln_mean(3) + st3('m3') + ln_centre(3, -1), d0[ND1:] + gl))
E(stamp('ln_done'))
sq3 = sq_all(3, 3)
E(sq3[:12])
E(barrier(['n0']))

groups = []


def wf(k, i):
    return WF + 8 * (k % 3) + 4 * i


def trr(k, i, rd, base, off):
    r = wf(k, i) + 2 * rd
    assert 0 <= off < 65536, off
    return f'ds_read_b64_tr_b16 {v(r, 2)}, v{base} offset:{off}'


mark = {}
cur_slot = [2]


def add_full_round(rho, n0):
    acc = ACC0 if rho % 2 == 0 else ACC1
    mark[f'R{rho}'] = len(groups)
    for st in range(9):
        n = n0 + st // 3
        for tile in range(4):
            k = len(groups)
            c, mat = tile >> 1, tile & 1
            rd = []
            if st % 3 == 0 and mat == 0:
                sl = (n + 2) % 3
                if sl != cur_slot[0]:
                    rd.append(f'v_add_u32 v{vRB0 + c}, {((sl - cur_slot[0]) * L_SS) & 0xffffffff}, v{vRB0 + c}')
                if c == 1:
                    cur_slot[0] = sl
            for i in range(2):
                for r in range(2):
                    rd.append(trr(k, i, r, vRB0 + c, (st % 3) * 16384 + mat * 8192 + i * 2048 + r * 512))
            m = [mf(acc + 16 * tile + 4 * u, v(wf(k, i), 4), xfrag(2 * st + i, u), st == 0 and i == 0)
                 for u in range(4) for i in range(2)]
            groups.append(dict(m=m, r=rd, ep=f'n{n}'))


QACC = ACC0 + 32


def add_q():
    mark['Q'] = len(groups)
    for blk in range(9):
        for tile in range(3):
            k = len(groups)
            rd = []
            if blk == 0 and tile == 0:
                rd += [f'v_lshlrev_b32 v{vRB1}, 4, v{vL}', f'v_add_u32 v{vRB1}, {L_QIMG}, v{vRB1}']
            for i in range(2):
                rd.append(f'ds_read_b128 {v(wf(k, i), 4)}, v{vRB1} offset:{((2 * blk + i) * 3 + tile) * 1024}')
            m = [mf(QACC + 8 * tile + 4 * u, v(wf(k, i), 4), xfrag(2 * blk + i, u), blk == 0 and i == 0)
                 for u in range(2) for i in range(2)]
            groups.append(dict(m=m, r=rd, ep='n12'))


def add_half():
    mark['RH'] = len(groups)
    for st in range(9):
        for mat in range(2):
            k = len(groups)
            rd = []
            if st == 0 and mat == 0:
                rd += [f'v_lshrrev_b32 v{vRB0}, 4, v{vL}', f'v_bfe_u32 v{vT2}, v{vL}, 2, 2',
                       f'v_lshl_add_u32 v{vT2}, v{vRB0}, 3, v{vT2}', f'v_xor_b32 v{vRB0}, s{sW}, v{vRB0}',
                       f'v_and_b32 v{vRB0}, 1, v{vRB0}', f'v_lshlrev_b32 v{vRB0}, 5, v{vRB0}',
                       f'v_lshl_add_u32 v{vRB0}, v{vT2}, 6, v{vRB0}', f'v_and_b32 v{vT2}, 3, v{vL}',
                       f'v_lshl_add_u32 v{vRB0}, v{vT2}, 3, v{vRB0}']
            if st == 6 and mat == 0:
                rd.append(f'v_add_u32 v{vRB0}, 49152, v{vRB0}')
            part = st // 3
            for i in range(2):
                for r in range(2):
                    rd.append(trr(k, i, r, vRB0, (part % 2) * 24576 + mat * 12288 + (2 * (st % 3) + i) * 2048 + r * 256))
            m = [mf(ACC0 + 16 * mat + 4 * u, v(wf(k, i), 4), xfrag(2 * st + i, u), st == 0 and i == 0)
                 for u in range(4) for i in range(2)]
            groups.append(dict(m=m, r=rd, ep=f'h{part}'))


def hown(e):
    return H + 4 * e if e < 12 else ACC1 + 4 * (e - 12)


DB = ACC1 + 16
STG = XV


def dacc(r):
    return ACC1 + 32 if r % 2 == 0 else ACC0 + 32


def dslot(r):
    return ((r + 2) % 4) * L_DSLOT


def add_down(r):
    mark[f'D{r}'] = len(groups)
    acc = dacc(r)
    delta = (dslot(r) - dslot(r - 1)) & 0xffffffff
    for who in range(2):
        for c in range(2):
            for pr in range(2):
                k = len(groups)
                rd = []
                if r > 0 and pr == 0:
                    rd.append(f'v_add_u32 v{DB + 2 * who + c}, {delta}, v{DB + 2 * who + c}')
                for i in range(2):
                    for q in range(2):
                        rd.append(trr(k, i, q, DB + 2 * who + c, q * 18432 + (2 * pr + i) * 2048))
                m = []
                for u in range(4):
                    for i in range(2):
                        e = 4 * (2 * pr + i) + u
                        B = v(hown(e), 4) if who == 0 else a(4 * e, 4)
                        m.append(mf(acc + 16 * c + 4 * u, v(wf(k, i), 4), B, who == 0 and pr == 0 and i == 0))
                groups.append(dict(m=m, r=rd, ep=f'd{r}'))
    k = len(groups)
    rd = []
    for c in range(2):
        if r > 0:
            rd.append(f'v_add_u32 v{DB + 4 + c}, {delta}, v{DB + 4 + c}')
        for q in range(2):
            rd.append(trr(k, c, q, DB + 4 + c, q * 18432))
    m = [mf(acc + 16 * c + 4 * u, v(wf(k, c), 4), a(64 + 4 * u, 4), False) for c in range(2) for u in range(4)]
    groups.append(dict(m=m, r=rd, ep=f'd{r}'))


add_full_round(0, 0)
add_full_round(1, 3)
add_full_round(2, 6)
add_full_round(3, 9)
add_q()
add_half()
for r in range(9):
    add_down(r)
mark['END'] = len(groups)
NG = len(groups)

gstart = [0]
for g in groups:
    gstart.append(gstart[-1] + len(g['m']))
NM = gstart[-1]
aux = [[] for _ in range(NM)]
pre = [[] for _ in range(NM)]
ep_start = {}
ep_start['n0'] = 0


def ep_of(k):
    return groups[k]['ep'] if k < NG else 'att'


for k in range(NG):
    n = len(groups[k]['m'])
    b = gstart[k]
    pre[b].append(P('need', v(wf(k, 0), 8)))
    last_before_bar = k + 2 < NG and ep_of(k + 3) != ep_of(k + 2)
    if k + 2 < NG:
        rd = groups[k + 2]['r']
        span = n // 2 if (last_before_bar and n == 8) else n
        for i, x in enumerate(rd):
            aux[b + (i * span) // len(rd)].append(x)
    if last_before_bar:
        e = ep_of(k + 3)
        tags = {'att': ['kvD', 'kvA']}.get(e, [e])
        aux[b + n - 1].append(('BAR', tags))
        ep_start[e] = b + n


def spread(items, lo, hi):
    n = len(items)
    for i, it in enumerate(items):
        j = lo + (i * (hi - lo)) // n
        if j + 1 < hi and (i + 1 == n or lo + ((i + 1) * (hi - lo)) // n > j + 1) and len(aux[j + 1]) < len(aux[j]):
            j += 1
        if aux[j] and isinstance(aux[j][-1], tuple) and aux[j][-1][0] == 'BAR':
            aux[j][-1:-1] = it
        else:
            aux[j] += it


order = ['n%d' % i for i in range(13)] + ['h0', 'h1', 'h2'] + ['d%d' % i for i in range(9)] + ['att']


FRAC = OPT.get('frac', 0.95)


def ep_span(e, frac=FRAC):
    lo = ep_start[e]
    hi = ep_start[order[order.index(e) + 1]] if e != 'att' else NM
    return lo, lo + max(1, int((hi - lo) * frac))


def touch(i):
    if not OPT['touch'] & 2:
        return []
    out = []
    if i == 0:
        out += [[f's_and_b32 s6, s{sM}, 7'], [f's_lshl_b32 s6, s6, 2'], [f's_add_u32 s6, s6, s{sW}'], [f's_mul_i32 s7, s{sS}, 331776']]
    else:
        out += [['s_add_u32 s6, s6, 32']]
    if i in (2, 3, 4, 5):
        out += [['s_cmp_ge_u32 s6, 72', 's_cselect_b32 s4, 72, 0'], ['s_sub_u32 s6, s6, s4'], [f's_mul_i32 s4, s4, {12 * 9216 // 72}'],
                ['s_add_u32 s7, s7, s4']]
    if i == 6:
        out += [['s_min_u32 s6, s6, 71']]
    out += [['s_lshl_b32 s4, s6, 7'], ['s_add_u32 s4, s4, s7'], [f'buffer_load_dword v{vDUM}, v{vTCH}, {srd(SD)}, s4 offen']]
    return out


adv = [[f'v_add_u32 v{vDMA}, 128, v{vDMA}']]

rb = readback(1)
RBN = OPT.get('rbn', 24)
first_rb = rb[:4]
spread([[x] for x in rb[4:]], 0, RBN - 5)
aux[RBN - 1].append(('BAR', []))
spread(dma_full(1, 3, 'n1')[5:], RBN, RBN + 36)
spread(touch_w(3) + touch_w(4), RBN + 36, ep_start['n1'] - 1)


def stage_items(n, q):
    st0 = 3 * (n % 3)
    return (adv if st0 == 0 and q == 0 else []) + dma_full(n, st0, f'n{n}')[5 * q:5 * q + 5]


stq = [(n, q) for n in range(2, 12) for q in range(3)]
for e in range(1, 10):
    cnt = 4 if e <= 3 else 3
    items = []
    for n, q in stq[:cnt]:
        assert e + 1 <= n <= e + 2
        items += stage_items(n, q)
    del stq[:cnt]
    h_ = len(items) // 2
    items = (touch_w(e + 4) if e + 4 < 12 else []) + items[:h_] + (touch(e - 3) if e >= 3 else []) + items[h_:]
    spread(items, *ep_span(f'n{e}'))
assert not stq

side = []


def poll(label, load, reg, want):
    side.append(f"""{label}_slow:
    s_mov_b32 s{sCNT}, 0
{label}_loop:
    s_sleep 4
    {load}
    s_waitcnt vmcnt(0)
    v_cmp_gt_u32 vcc, {want}, v{reg}
    s_add_u32 s{sCNT}, s{sCNT}, 1
    s_nop 4
    s_cmp_eq_u64 vcc, 0
    s_cbranch_scc1 {label}_ok
    s_cmp_lt_u32 s{sCNT}, 0x4000
    s_cbranch_scc1 {label}_loop
    s_branch {label}_ok
""")
    return [f'v_cmp_gt_u32 vcc, {want}, v{reg}', 's_cmp_eq_u64 vcc, 0', f's_cbranch_scc0 {label}_slow', f'{label}_ok:']


def arrive(ep, tags, off, cond):
    g = aux[ep_start[ep] - 1]
    for i, x in enumerate(g):
        if isinstance(x, tuple):
            g[i] = ('BAR', x[1] + tags)
    spread(cond + [[f'v_min_u32 v{vT2}, 1, v{vT2}'], [f'v_lshlrev_b32 v{vT2}, 30, v{vT2}'], [f'v_mov_b32 v{vT3}, 1'],
                   [f'buffer_atomic_add v{vT3}, v{vT2}, {srd(SB)}, 0 offen offset:{off} sc1']],
           ep_start[ep], ep_start[ep] + 12)


ARR = OPT.get('arr', 6)
if OPT.get('stag', 1):
    g_ = aux[ep_start[f'n{ARR}'] - 1]
    g_[-1] = ('BAR', g_[-1][1] + ['early'])
    for e in range(4):
        it = [[f'v_mov_b32 v{vT3}, 1'], [f's_and_b32 s{sT1}, s{sS}, 3']] if e == 0 else []
        it += [[f's_cmp_eq_u32 s{sT1}, {e}', f's_cselect_b32 s{sT0}, s{sW}, 1'], [f'v_or_b32 v{vT2}, s{sT0}, v{vL}'],
               [f'v_lshlrev_b32 v{vT2}, 16, v{vT2}'], [f'buffer_atomic_add v{vT3}, v{vT2}, {srd(SB)}, 0 offen sc1']]
        lo = ep_start[f'n{ARR}'] + 48 * e
        spread(it, lo, lo + 14)
else:
    arrive(f'n{ARR}', ['early'], 0, [[f'v_lshl_or_b32 v{vT2}, s{sW}, 6, v{vL}']])
def code_touch(lab, ep):
    spread([[f's_getpc_b64 s[0:1]', f'{lab}:'], [f'v_lshrrev_b32 v{vT2}, 4, v{vL}'], [f'v_add_u32 v{vT2}, s18, v{vT2}'],
            [f'v_min_u32 v{vT2}, (L_end-{lab})/128, v{vT2}'], [f'v_lshlrev_b32 v{vT2}, 7, v{vT2}'],
            [f'global_load_dword v{vDUM}, v{vT2}, s[0:1]']], ep_start[ep] + 62, ep_start[ep] + 80)


if OPT.get('ctouch', 1):
    code_touch('L_ct1', 'n8')
ld0 = f'buffer_load_dword v{vT3}, off, {srd(SB)}, 0 sc1'
spread([[ld0]], ep_start['n9'] + 2, ep_start['n9'] + 4)
qd = [poll('L_p0', ld0, vT3, '0x100')]
qd += [[x] for x in f"""v_lshlrev_b32 v{vTCH}, 4, v{vL}
s_mul_i32 s{sT0}, s{sW}, 214
s_lshr_b32 s{sT0}, s{sT0}, 4
s_lshl_b32 s{sT0}, s{sT0}, 10
s_mul_i32 s{sT2}, s{sS}, 55296
s_add_u32 s{sT2}, s{sT2}, s{sT0}""".split('\n')]
for j in range(14):
    if j % 4 == 0:
        qd.append([f's_add_u32 m0, s{sT0}, {L_QIMG + j * 1024}'])
        qd.append([f's_add_u32 s{sT1}, s{sT2}, {WS_WQT + j * 1024}'])
    qd.append([T(f'buffer_load_dwordx4 v{vTCH}, {srd(SWS)}, s{sT1} offen offset:{1024 * (j % 4)} sc1 lds', 'n12')])
spread(qd, *ep_span('n10'))


def dma_half(part):
    out = []
    for pr in range(3):
        out.append([f's_add_u32 m0, s{sT3}, {part * 24576 + pr * 4096}'])
        for i in range(2):
            out.append([T(f'buffer_load_dwordx4 v{vDMA2}, {srd(SW)}, s{TAB + 4 * (3 * part + pr) + 2 * i} offen offset:{2048 * i} lds', f'h{part}')])
    return out


half_setup = [[x] for x in f'''s_and_b32 s{sT0}, s{sW}, 1
s_lshr_b32 s{sT1}, s{sW}, 1
s_mul_i32 s{sT3}, s{sT1}, 12288
s_lshl_b32 s{sT1}, s{sT0}, 10
s_add_u32 s{sT3}, s{sT3}, s{sT1}
s_and_b32 s{sT1}, s{sS}, 1
s_xor_b32 s{sT1}, s{sT1}, 1
s_lshl_b32 s{sT1}, s{sT1}, 9
s_mul_i32 s{sT2}, s{sS}, 576
s_add_u32 s{sT2}, s{sT2}, s{sT1}
v_lshrrev_b32 v{vDMA2}, 2, v{vL}
v_lshl_add_u32 v{vDMA2}, s{sT0}, 4, v{vDMA2}
v_mul_u32_u24 v{vDMA2}, 9216, v{vDMA2}
v_bfe_u32 v{vT2}, v{vL}, 4, 2
v_and_b32 v{vT2}, 2, v{vT2}
v_xor_b32 v{vT2}, v{vT2}, v{vL}
v_and_b32 v{vT2}, 3, v{vT2}
v_lshlrev_b32 v{vT2}, 4, v{vT2}
v_add3_u32 v{vDMA2}, v{vDMA2}, v{vT2}, s{sT2}'''.split('\n')]
spread(half_setup, *ep_span('n9'))
spread(dma_half(0) + dma_half(1), *ep_span('n11'))
wd_setup = [[f's_mul_i32 s{sT1}, s{sS}, 331776']]
wd_setup2 = [[x] for x in f'''v_lshrrev_b32 v{vDMA}, 3, v{vL}
v_lshl_add_u32 v{vDMA}, s{sW}, 3, v{vDMA}
v_mul_u32_u24 v{vDMA}, 1152, v{vDMA}
v_lshrrev_b32 v{vT2}, 3, v{vL}
v_and_b32 v{vT2}, 6, v{vT2}
v_xor_b32 v{vT2}, v{vT2}, v{vL}
v_and_b32 v{vT2}, 7, v{vT2}
v_lshlrev_b32 v{vT2}, 4, v{vT2}
v_add3_u32 v{vDMA}, v{vDMA}, v{vT2}, s{sT1}
s_and_b32 s{sT0}, s{sS}, 1
s_mul_i32 s{sT2}, s{sT0}, 36864
s_xor_b32 s{sT0}, s{sT0}, 1
s_mul_i32 s{TAB + 8}, s{sT0}, {256 * 1152}
s_mul_i32 s{sWL}, s{sW}, 9216'''.split('\n')]
wd_setup2 += [[f's_add_u32 s{TAB + kap}, s{sT2}, {kap * 36864 - 1024 * (kap % 4)}'] for kap in range(8)]
spread(wd_setup + dma_half(2) + wd_setup2, *ep_span('n12', 0.95))


def dma_down(r):
    out = [] if r == 0 else list(adv)
    for kap in range(9):
        if kap % 4 == 0:
            out.append([f's_add_u32 m0, s{sWL}, {dslot(r) + kap * 1024}'])
        out.append([T(f'buffer_load_dwordx4 v{vDMA}, {srd(SD)}, s{TAB + kap} offen offset:{1024 * (kap % 4)} lds', f'd{r}')])
    return out


vHW, vHR, vH8W, vH8R = vRB1, vTCH, DB + 6, DB + 7
dn_setup = [[x] for x in f'''v_bfe_u32 v{vT2}, v{vL}, 2, 3
v_lshlrev_b32 v{DB}, 7, v{vT2}
v_lshrrev_b32 v{vT2}, 1, v{vT2}
s_and_b32 s{sT0}, s{sW}, 1
s_lshl_b32 s{sT1}, s{sT0}, 1
v_xor_b32 v{vT2}, s{sT1}, v{vT2}
v_lshl_add_u32 v{DB}, v{vT2}, 5, v{DB}
v_and_b32 v{vT2}, 3, v{vL}
v_lshl_add_u32 v{DB}, v{vT2}, 3, v{DB}
v_lshrrev_b32 v{vT2}, 5, v{vL}
v_mul_u32_u24 v{vT2}, 9216, v{vT2}
v_add_u32 v{DB}, v{DB}, v{vT2}
v_add_u32 v{DB + 4}, {dslot(0) + 8192}, v{DB}
v_xor_b32 v{DB + 5}, 32, v{DB + 4}
s_lshl_b32 s{sT1}, s{sT0}, 10
s_add_u32 s{sT1}, s{sT1}, {dslot(0)}
s_xor_b32 s{sT2}, s{sT1}, 1024
v_add_u32 v{DB + 2}, s{sT2}, v{DB}
v_add_u32 v{DB}, s{sT1}, v{DB}
v_xor_b32 v{DB + 1}, 32, v{DB}
v_xor_b32 v{DB + 3}, 32, v{DB + 2}
s_mul_i32 s{sT1}, s{sW}, 6144
v_lshl_add_u32 v{vHW}, v{vL}, 4, s{sT1}
s_xor_b32 s{sT1}, s{sW}, 1
s_mul_i32 s{sT1}, s{sT1}, 6144
v_lshl_add_u32 v{vHR}, v{vL}, 4, s{sT1}
v_lshl_add_u32 v{vH8W}, s{sT0}, 3, v{vHW}
v_lshl_add_u32 v{vH8R}, s{sT0}, 3, v{vHR}'''.split('\n')]
assert dslot(0) % 2048 == 0
spread(dma_down(0), *ep_span('h0'))
spread(dn_setup, gstart[mark['RH']] + 1, ep_start['h1'] - 1)


def hx_write(es):
    return [[f'ds_write_b128 v{vHW}, {v(hown(e), 4)} offset:{(e // 6) * 24576 + (e % 6) * 1024}'] for e in es]


def hx_read(es):
    return [[f'ds_read_b128 {a(4 * (e ^ 2), 4)}, v{vHR} offset:{(e // 6) * 24576 + (e % 6) * 1024}'] for e in es]


spread(dma_down(1) + hx_write(range(0, 6)), *ep_span('h1', 0.85))
spread(hx_read(range(0, 6)) + hx_write(range(6, 12)), *ep_span('h2', 0.85))
BY = gstart[mark['D0'] + 4] - 1
spread(hx_read(range(6, 12)), ep_start['d0'], ep_start['d0'] + 12)
aux[BY].append(('BAR', []))
k8_reads = [[f'ds_read_b128 {a(64 + 4 * u, 4)}, v{vHW if u < 2 else vHR} offset:{49152 + 4096 + (u & 1) * 1024}'] for u in range(4)]
spread(hx_read(range(12, 16)) + k8_reads, BY + 1, BY + 7)
spread(dma_down(2), BY + 7, ep_start['d1'] - 1)
spread(dma_down(3) + dma_down(4), *ep_span('d1', 0.9))
for r in range(5, 9):
    spread(dma_down(r), *ep_span(f'd{r - 3}'))


def dma_kv(lds_base, src_base, npieces, tag):
    out = [[f's_mul_i32 s{sT0}, s{sW}, {npieces * 1024}']]
    for j in range(npieces):
        if j % 4 == 0:
            out.append([f's_add_u32 m0, s{sT0}, {lds_base + j * 1024}'])
            out.append([f's_add_u32 s{sT1}, s{sT0}, {WS_KV + src_base + j * 1024}'])
        out.append([T(f'buffer_load_dwordx4 v{vDMA2}, {srd(SWS)}, s{sT1} offen offset:{1024 * (j % 4)} sc1 lds', tag)])
    return out


arrive('d0', ['kvst'], 128, [[f's_cmp_ge_u32 s{sS}, 6', f's_cselect_b32 s{sT0}, 1, s{sW}'], [f'v_or_b32 v{vT2}, s{sT0}, v{vL}']])
ldA = f'buffer_load_dword v{vT3}, off, {srd(SB)}, 0 offset:128 sc1'
spread([[ldA], [f'v_lshlrev_b32 v{vDMA2}, 4, v{vL}']], ep_start['d5'], ep_start['d5'] + 4)
spread([poll('L_pa', ldA, vT3, '0x60')] + dma_kv(L_KV0, 0, 13, 'kvD'), *ep_span('d6'))
spread(dma_kv(0, 10 * REC, 9, 'kvA'), *ep_span('d7'))
spread(dma_kv(L_DSLOT, 10 * REC + L_DSLOT, 9, 'kvB'), *ep_span('d8'))
spread(dma_kv(2 * L_DSLOT, 10 * REC + 2 * L_DSLOT, 9, 'kvC'), ep_start['att'], NM)

fills = []


def gelu_pair(g, u_, uu, dst):
    t0, t1 = vT0, vT1
    return [f'v_mul_f32 v{t0}, v{g}, v{g}', f'v_mul_f32 v{t1}, v{g + 1}, v{g + 1}',
            f'v_fma_f32 v{t0}, v{t0}, v{K1 + uu}, v{K0 + uu}', f'v_fma_f32 v{t1}, v{t1}, v{K1 + uu}, v{K0 + uu}',
            f'v_mul_f32 v{t0}, v{t0}, v{g}', f'v_mul_f32 v{t1}, v{t1}, v{g + 1}',
            f'v_exp_f32 v{t0}, v{t0}', f'v_exp_f32 v{t1}, v{t1}',
            f'v_mul_f32 v{u_}, v{g}, v{u_}',
            f'v_fma_f32 v{t0}, v{t0}, v{KR + uu}, v{KR + uu}', f'v_fma_f32 v{t1}, v{t1}, v{KR + uu}, v{KR + uu}',
            f'v_rcp_f32 v{t0}, v{t0}', f'v_rcp_f32 v{t1}, v{t1}',
            f'v_mul_f32 v{u_ + 1}, v{g + 1}, v{u_ + 1}',
            f'v_mul_f32 v{t0}, v{t0}, v{u_}', f'v_mul_f32 v{t1}, v{t1}, v{u_ + 1}',
            f'v_cvt_pk_bf16_f32 v{dst}, v{t0}, v{t1}']


def gelu_full(rho):
    acc = ACC0 if rho % 2 == 0 else ACC1
    out = []
    for c in range(2):
        for u in range(4):
            for pr in range(2):
                out += gelu_pair(acc + 32 * c + 4 * u + 2 * pr, acc + 32 * c + 16 + 4 * u + 2 * pr, u, hown(4 * rho + u) + 2 * c + pr)
    return out


vKS, vKP, vKT, vSTA, vSTB, vLC = [ACC0 + 56 + i for i in range(6)]
fills.append((RBN, ep_start['n1'] - 8, ln_den(3, 3)))

G0 = ACC1


def o_addr(va, vb, t):
    return [f's_lshl_b32 s{sT1}, s{sI1}, 4', f'v_xor_b32 v{t}, s{sT1}, v{vL}', f'v_lshlrev_b32 v{va}, 4, v{t}',
            f'v_lshlrev_b32 v{vb}, 3, v{t}', f'v_lshrrev_b32 v{t}, 5, v{vL}', f'v_lshl_add_u32 v{vb}, v{t}, 30, v{vb}',
            f's_lshl_b32 s{sT0}, s{sMB}, 4', f's_add_u32 s{sT0}, s{sT0}, s{sS}', f's_mul_i32 s{sT0}, s{sT0}, 2304',
            f's_add_u32 s{sT0}, s{sT0}, {WS_O}']


def flag_addr(va):
    return [f'v_min_u32 v{va}, 1, v{vL}', f'v_lshlrev_b32 v{va}, 30, v{va}', f's_lshl_b32 s{sT1}, s{sM}, 4',
            f's_add_u32 s{sT1}, s{sT1}, s{sS}', f's_lshl_b32 s{sT1}, s{sT1}, 2', f's_add_u32 s{sT1}, s{sT1}, s{sW}',
            f's_lshl_b32 s{sT1}, s{sT1}, 2', f's_add_u32 s{sT1}, s{sT1}, {WS_FLAG}']


GD = H + 28
r0g = [P('waittag', ({'gth'}, False))]
for j in range(2):
    r0g += [f'ds_read_b64_tr_b16 {v(GD + 4 * j + 2 * rd_, 2)}, v{vGS + j} offset:{128 * rd_}' for rd_ in range(2)]
r0s = [f'v_add_u32 v{GD + 12}, s{sJQ}, v{G0 + 3}', f'v_add_u32 v{GD + 13}, s{sJO}, v{G0 + 3}']
r0s += o_addr(GD + 14, GD + 15, G0 + 11) + [f's_mov_b32 s{sJQ}, s{sT0}']
r0s += [f'v_mov_b32 v{GD + 8 + i}, -1' for i in range(4)]
r0s += flag_addr(GD + 16) + [f's_mov_b32 s{sJO}, s{sT1}', f'v_mov_b32 v{GD + 17}, 0']
est_ = [T(f'buffer_store_dwordx4 {v(GD, 4)}, v{GD + 12}, {srd(SWS)}, 0 offen sc1', 'early'),
        T(f'buffer_store_dwordx4 {v(GD + 4, 4)}, v{GD + 13}, {srd(SWS)}, 0 offen sc1', 'early'),
        T(f'buffer_store_dwordx4 {v(GD + 8, 4)}, v{GD + 14}, {srd(SWS)}, s{sJQ} offen sc1', 'early'),
        T(f'buffer_store_dwordx4 {v(GD + 8, 4)}, v{GD + 14}, {srd(SWS)}, s{sJQ} offen offset:1024 sc1', 'early'),
        T(f'buffer_store_dwordx2 {v(GD + 8, 2)}, v{GD + 15}, {srd(SWS)}, s{sJQ} offen offset:2048 sc1', 'early'),
        T(f'buffer_store_dword v{GD + 17}, v{GD + 16}, {srd(SWS)}, s{sJO} offen sc1', 'early')]
lo = ep_start['n3'] + OPT.get('est', 36)
spread([[x] for x in est_], lo, lo + OPT.get('estw', 150))
PK = G0 + 16
t1_, t2_, t3_, d_ = G0 + 4, G0 + 5, G0 + 6, G0 + 7
r0 = f"""s_lshl_b32 s{sT0}, s{sW}, 7
v_and_b32 v{G0}, 15, v{vL}
v_lshlrev_b32 v{G0 + 3}, 4, v{vL}
s_add_u32 s{sT0}, s{sT0}, {L_STATS}
v_lshl_add_u32 v{G0 + 1}, v{G0}, 2, s{sT0}
v_xor_b32 v{G0 + 2}, 128, v{G0 + 1}
ds_read_b32 v{KR}, v{G0 + 1}
ds_read_b32 v{KR + 1}, v{G0 + 1} offset:64
ds_read_b32 v{KR + 2}, v{G0 + 2}
ds_read_b32 v{KR + 3}, v{G0 + 2} offset:64
s_lshr_b32 s9, s{sMB}, 1
s_mul_i32 s9, s9, {REC}
s_add_u32 s9, s9, {WS_KV}
s_lshl_b32 s10, s{sW}, 8
s_add_u32 s10, s10, {L_KVS}
v_lshrrev_b32 v{t1_}, 5, v{vL}
v_mul_u32_u24 v{t1_}, 1152, v{t1_}
v_add_u32 v{t1_}, s10, v{t1_}
v_and_b32 v{t2_}, 31, v{vL}
v_lshl_add_u32 v{PK + 1}, v{t2_}, 3, v{t1_}
v_and_b32 v{t2_}, 17, v{vL}
v_lshl_add_u32 v{t1_}, v{t2_}, 3, v{t1_}
v_bfe_u32 v{t2_}, v{vL}, 1, 1
v_lshl_add_u32 v{t1_}, v{t2_}, 6, v{t1_}
v_bfe_u32 v{t2_}, v{vL}, 2, 2
v_lshl_add_u32 v{PK + 2}, v{t2_}, 4, v{t1_}
s_and_b32 s{sT0}, s{sW}, 1
s_lshl_b32 s{sT1}, s{sT0}, 10
s_lshl_b32 s{sT2}, s{sS}, 9
s_add_u32 s{sT1}, s{sT1}, s{sT2}
s_lshl_b32 s{sT2}, s{sT0}, 3
s_add_u32 s{sT2}, s{sT2}, 2040""".split('\n')
r0 += [[f's_cmp_eq_u32 s{sS}, 4', f's_cselect_b32 s{sT1}, s{sT2}, s{sT1}', f's_cselect_b32 s{sT3}, 1, 2',
        f's_cselect_b64 s[{sMK4}:{sMK4 + 1}], -1, 0'], [f's_cmp_lt_u32 s{sS}, 2', f's_cselect_b32 s{sT3}, 0, s{sT3}']]
r0 += f"""s_lshl_b32 s{sT2}, s{sI1}, 5
v_xor_b32 v{t1_}, s{sT2}, v{vL}
v_lshl_add_u32 v{PK}, v{t1_}, 3, s{sT1}
v_and_b32 v{t2_}, 1, v{vL}
v_cmp_gt_u32 vcc, s{sT3}, v{t2_}
v_mov_b32 v{t3_}, {OOB}
v_lshrrev_b32 v{t1_}, 3, v{t1_}
v_cndmask_b32 v{PK}, v{PK}, v{t3_}, vcc
v_lshl_or_b32 v{t1_}, s{sT0}, 3, v{t1_}""".split('\n')
r0 += [[f's_cmp_eq_u32 s{sS}, 3', f's_cselect_b32 s{sT1}, 8, 0'],
       [f's_cmp_eq_u32 s{sS}, 5', f's_cselect_b32 s{sT1}, 10, s{sT1}', f's_cselect_b32 s{sT2}, 16, 0',
        f's_cselect_b32 s{sMK5}, 0x01010101, 0'], f's_mov_b32 s{sMK5 + 1}, s{sMK5}', f's_lshr_b32 s{sT3}, 0x2c, s{sS}',
       [f's_and_b32 s{sT3}, s{sT3}, 1', f's_cselect_b64 s[{sMKV}:{sMKV + 1}], -1, 0']]
r0 += f"""v_and_b32 v{d_}, 7, v{vL}
v_add_u32 v{d_}, s{sT1}, v{d_}
v_cndmask_b32 v{d_}, v{d_}, 18, s[{sMK5}:{sMK5 + 1}]
v_cmp_gt_u32 vcc, s{sT2}, v{d_}
v_and_b32 v{t2_}, 14, v{d_}
v_xor_b32 v{t1_}, v{t1_}, v{t2_}
v_lshlrev_b32 v{t1_}, 3, v{t1_}
v_lshl_add_u32 v{t1_}, v{d_}, 7, v{t1_}
v_add_u32 v{t1_}, 2560, v{t1_}
v_cndmask_b32 v{t1_}, v{t1_}, v{t3_}, vcc
v_cndmask_b32 v{PK}, v{PK}, v{t1_}, s[{sMKV}:{sMKV + 1}]
v_mul_u32_u24 v{t1_}, 72, v{G0}
v_add_u32 v{t1_}, s8, v{t1_}
v_lshrrev_b32 v{t2_}, 4, v{vL}
v_lshl_add_u32 v{PK + 3}, v{t2_}, 3, v{t1_}
v_cmp_gt_u32 vcc, 2, v{t2_}
v_add_u32 v{t1_}, 32, v{PK + 3}
v_and_b32 v{t2_}, 1, v{t2_}
v_lshl_add_u32 v{t2_}, v{t2_}, 3, s10
v_lshl_add_u32 v{t2_}, v{G0}, 4, v{t2_}
v_mov_b32 v{d_}, {f2u(1.0 / C0)}
v_mov_b32 v{PK + 5}, {f2u(QS / C0)}
v_cndmask_b32 v{PK + 4}, v{t2_}, v{t1_}, vcc
v_cndmask_b32 v{PK + 5}, v{d_}, v{PK + 5}, vcc
v_add_u32 v{t1_}, s8, v{G0 + 3}
ds_write_b128 v{t1_}, {v(PK, 4)}""".split('\n')
for u in range(4):
    r0 += [f'v_rcp_f32 v{K0 + u}, v{KR + u}', f'v_mul_f32 v{KR + u}, v{KR + u}, v{KR + u}',
           f'v_mul_f32 v{K1 + u}, v{K0 + u}, v{K0 + u}', f'v_mul_f32 v{K0 + u}, {f2u(C0)}, v{K0 + u}',
           f'v_mul_f32 v{K1 + u}, {f2u(0.044715)}, v{K1 + u}', f'v_mul_f32 v{K1 + u}, v{K1 + u}, v{K0 + u}']
    if u == 0:
        r0.append(f'ds_write_b64 v{t1_}, {v(PK + 4, 2)} offset:1024')
fills.append((ep_start['n1'], gstart[mark['R1']], r0g + r0 + r0s))

unpark = [f'v_lshl_add_u32 v{vT0}, v{vL}, 4, s8', f'ds_read_b128 {v(vKS, 4)}, v{vT0}', f'ds_read_b64 {v(vKS + 4, 2)}, v{vT0} offset:1024']
qe = []
for tile in (2, 0, 1):
    if tile != 1:
        qe += [f"v_mul_f32 v{vT0 + u}, {f'v{vLC}' if tile == 2 else f2u(QS / C0)}, v{K0 + u}" for u in range(2)]
    for u in range(2):
        A = QACC + 8 * tile + 4 * u
        qe += [f'v_mul_f32 v{A + j}, v{vT0 + u}, v{A + j}' for j in range(4)]
        qe += [f'v_cvt_pk_bf16_f32 v{A}, v{A}, v{A + 1}', f'v_cvt_pk_bf16_f32 v{A + 1}, v{A + 2}, v{A + 3}']
        qe += [f'ds_write_b64 v{vSTB if tile == 2 else vSTA}, {v(A, 2)} offset:{u * 1152 + (40 if tile == 1 else 0)}']
    A = QACC + 16
    if tile == 2:
        qe += [f'ds_read_b64 {v(A + 2, 2)}, v{vKP}', f'ds_read_b64_tr_b16 {v(A + 6, 2)}, v{vKT}']
    if tile == 0:
        qe += [f'v_mov_b32 v{A}, 0x3f803f80',
               f'v_cndmask_b32 v{A + 2}, v{A + 2}, v{A + 3}, s[{sMK4}:{sMK4 + 1}]',
               f'v_cndmask_b32 v{A + 3}, v{A + 3}, v{A}, s[{sMK4}:{sMK4 + 1}]',
               f'v_cndmask_b32 v{A + 2}, v{A + 2}, v{A + 6}, s[{sMKV}:{sMKV + 1}]',
               f'v_cndmask_b32 v{A + 3}, v{A + 3}, v{A + 7}, s[{sMKV}:{sMKV + 1}]',
               f'v_cndmask_b32 v{A + 2}, v{A + 2}, v{A}, s[{sMK5}:{sMK5 + 1}]',
               f'v_cndmask_b32 v{A + 3}, v{A + 3}, v{A}, s[{sMK5}:{sMK5 + 1}]',
               T(f'buffer_store_dwordx2 {v(A + 2, 2)}, v{vKS}, {srd(SWS)}, s9 offen sc1', 'kvst')]
g3 = gelu_full(3)
NQ = 17 * OPT.get('nq', 10)
assert NQ >= 17 * 4
fills.append((gstart[mark['R1']] + 4, gstart[mark['R2']], gelu_full(0)))
fills.append((gstart[mark['R2']] + 4, gstart[mark['R3']], gelu_full(1)))
fills.append((gstart[mark['R3']] + 4, gstart[mark['Q']], gelu_full(2)))
fills.append((gstart[mark['Q']] + 4, gstart[mark['RH']], unpark + g3[:NQ]))
fills.append((gstart[mark['RH']] + 4, ep_start['d0'], qe + g3[NQ:]))
fills.append((ep_start['d0'], gstart[mark['D0']], flat(hx_write(range(12, 16)))))
gh = []
for u in range(4):
    for pr in range(2):
        gh += gelu_pair(ACC0 + 4 * u + 2 * pr, ACC0 + 16 + 4 * u + 2 * pr, u, ACC0 + 4 * u + pr)
    gh.append(f'ds_write_b64 v{vH8W if u < 2 else vH8R}, {v(ACC0 + 4 * u, 2)} offset:{49152 + 4096 + (u & 1) * 1024}')
fills.append((gstart[mark['D0']] + 2, BY - 1, gh))

vPS = K0
QA, QB, QR = 10, 14, 18
ps_setup = f'''s_lshl_b32 s{sT2}, s{sMB}, 4
s_add_u32 s{sT2}, s{sT2}, s{sS}
s_xor_b32 s{sT3}, s{sT2}, 16
s_mul_i32 s{sT2}, s{sT2}, 36864
s_mul_i32 s{sT3}, s{sT3}, 36864
s_and_b32 s{sCNT}, s{sW}, 1
s_lshl_b32 s{sCNT}, s{sCNT}, 11
v_lshl_add_u32 v{vPS}, v{vL}, 4, s{sCNT}
v_add_u32 v{vPS + 1}, s{sT3}, v{vPS}
v_add_u32 v{vPS}, s{sT2}, v{vPS}'''.split('\n')


ND = OPT.get('nd', 2)
deferred = []


def part_out(r):
    acc = dacc(r)
    stg = STG + 16 * (r % 2)
    out = [f's_mov_b32 s{sT2}, {WS_P + r * 4096}'] if r < 8 else []
    for c in range(2):
        for blk in range(2):
            d = stg + 8 * c + 4 * blk
            for uu in range(2):
                A = acc + 16 * c + 4 * (2 * blk + uu)
                out += [f'v_cvt_pk_bf16_f32 v{d + 2 * uu}, v{A}, v{A + 1}', f'v_cvt_pk_bf16_f32 v{d + 2 * uu + 1}, v{A + 2}, v{A + 3}']
            st = lambda src: T(f'buffer_store_dwordx4 {src}, v{vPS + blk}, {srd(SWS)}, s{sT2} offen offset:{1024 * c} sc1', 'pst')
            if r == 8:
                deferred.insert(2 * c + blk, (r, st(v(d, 4))))
            elif (2 * blk + c) < ND:
                out.append(st(v(d, 4)))
            else:
                z = 164 + 4 * len(deferred)
                out += [f'v_accvgpr_write_b32 a{z + j}, v{d + j}' for j in range(4)]
                deferred.append((r, st(a(z, 4))))
    return out


vKB, vKRB, vVB, vDL, vIDX = ACC0, ACC0 + 1, ACC0 + 2, ACC0 + 6, ACC0 + 8
q_rb = f'''s_mul_i32 s{sT3}, s{sW}, 2304
s_add_u32 s{sT3}, s{sT3}, {L_STASH}
v_and_b32 v{vT0}, 31, v{vL}
v_lshrrev_b32 v{vT1}, 5, v{vL}
v_mul_u32_u24 v{vT2}, 72, v{vT0}
v_add_u32 v{vT2}, s{sT3}, v{vT2}
v_mul_u32_u24 v{vIDX}, 36, v{vT1}
v_add_u32 v{vIDX}, v{vIDX}, v{vT2}
v_lshl_add_u32 v{vT2}, v{vT1}, 4, v{vT2}
ds_read2_b64 {v(QA, 4)}, v{vT2} offset0:0 offset1:1
ds_read2_b32 {v(QB, 2)}, v{vT2} offset0:9 offset1:10
ds_read2_b32 {v(QB + 2, 2)}, v{vT2} offset0:11 offset1:12
ds_read_b32 v{QR}, v{vIDX} offset:32
v_mov_b32 v{QR + 1}, 0'''.split('\n')
att_setup = f'''v_lshlrev_b32 v{vKB}, 4, v{vL}
v_add_u32 v{vKB}, {L_KV0}, v{vKB}
v_and_b32 v{vT0}, 31, v{vL}
v_lshrrev_b32 v{vT1}, 5, v{vL}
v_lshlrev_b32 v{vKRB}, 4, v{vT0}
v_add_u32 v{vKRB}, {L_KV0 + 2048}, v{vKRB}'''.split('\n')
att_setup += [[f'v_cmp_eq_u32 vcc, 22, v{vT0}', 's_nop 1', f'v_cndmask_b32 v{vT0}, v{vT0}, 18, vcc']]
att_setup += f'''v_bfe_u32 v{vT2}, v{vT0}, 1, 3
v_xor_b32 v{vT2}, v{vT2}, v{vT1}
v_lshlrev_b32 v{vT2}, 4, v{vT2}
v_lshl_add_u32 v{vT2}, v{vT0}, 7, v{vT2}
v_add_u32 v{vT2}, {L_KV0 + 2560}, v{vT2}
v_mov_b32 v{vT1}, {L_OOR}
v_mov_b32 v{vDL}, {(-L_KV0) & 0xffffffff}
v_mov_b32 v{vDL + 1}, {13 * REC}'''.split('\n')
att_setup += [[f'v_cmp_lt_u32 vcc, 18, v{vT0}', 's_nop 1', f'v_cndmask_b32 v{vVB}, v{vT2}, v{vT1}, vcc',
               f'v_cndmask_b32 v{vDL}, v{vDL}, 0, vcc', f'v_cndmask_b32 v{vDL + 1}, v{vDL + 1}, 0, vcc']]
att_setup += [f'v_xor_b32 v{vVB + f}, {32 * f}, v{vVB}' for f in range(1, 4)]
att_setup += [f'v_mov_b32 v{vIDX}, 0xdddddddd']
for r in range(1, 9):
    extra = {1: ps_setup, 2: q_rb, 3: att_setup}.get(r, [])
    fl = (extra + part_out(r - 1)) if r == 1 else (part_out(r - 1) + extra)
    fills.append((gstart[mark[f'D{r}']] + 4, gstart[mark[f'D{r + 1}' if r < 8 else 'END']] - 2, fl))


def c_of(x):
    if isinstance(x, list):
        return sum(c_of(y) for y in x)
    if isinstance(x, tuple):
        return 12
    if isinstance(x, Ins):
        return 4 if x.pseudo else cost(x.text)
    if x.endswith(':'):
        return 0
    return cost(x)


auxc = [c_of(a_) for a_ in aux]
for i in range(1, NM):
    auxc[i - 1] += c_of(pre[i])
fillat = [[] for _ in range(NM)]
for lo, hi, fl in fills:
    tot = c_of(fl)
    a0, a1 = 0.0, 4000.0
    for _ in range(50):
        L = (a0 + a1) / 2
        if sum(max(0.0, L - auxc[i]) for i in range(lo, hi)) >= tot:
            a1 = L
        else:
            a0 = L
    L = a1
    gi = 0
    credit = 0.0
    for i in range(lo, hi):
        credit += max(0.0, L - auxc[i])
        while gi < len(fl) and credit >= c_of(fl[gi]) / 2:
            credit -= c_of(fl[gi])
            fillat[i].append(fl[gi])
            gi += 1
    fillat[hi - 1] += fl[gi:]

E(groups[0]['r'][:2])
E(first_rb[:2])
E(groups[0]['r'][2:])
E(first_rb[2:])
E(groups[1]['r'])
E(sq3[12:])
allm = [m for g in groups for m in g['m']]
stamp_at = {gstart[mark[k]]: k for k in ('R1', 'R2', 'R3', 'Q', 'RH', 'D0', 'D1', 'D5')}
if OPT['stamp'] == 2:
    stamp_at = {ep_start[k]: k for k in order if k not in ('n0', 'd2', 'd3', 'd5', 'd7', 'd8')}
    stamp_at[RBN] = 'rbn'
    stamp_at[BY + 1] = 'BY'
est = 0
for i in range(NM):
    if i in stamp_at:
        print('est before', stamp_at[i], est)
    if i in stamp_at:
        E(stamp(stamp_at[i]))
    E(pre[i])
    E(allm[i])
    bar = None
    for x in aux[i]:
        if isinstance(x, tuple):
            bar = x
        else:
            E(x)
    E(fillat[i])
    if bar:
        E(barrier(bar[1]))
    est += max(16, 8 + auxc[i] + c_of(fillat[i]))
print('stream estimate cycles', est, 'mfma', NM)
E(stamp('down_end'))

S0 = 192
OA, OB = 96, 112
KM = 24
KRM = 32
VF = 72
XR = 48
vOUT = 40
vG = 55
PV = 137 + 3
NPA = 23


def sbuf(t):
    return S0 + 32 * (t % 2)


def rec_win(beta):
    if beta < 10:
        return 0, beta * REC
    if beta < 23:
        return 1, (beta - 10) * REC
    return 2, (beta - 23) * REC


win = {'k': 0, 'r': 0, 0: 0, 1: 0, 2: 0, 3: 0}


def bump(which, w_):
    out = []
    while win[which] < w_:
        if which == 'k' or which == 'r':
            reg = vKB if which == 'k' else vKRB
            out.append(f'v_add_u32 v{reg}, {((-L_KV0) & 0xffffffff) if win[which] == 0 else 13 * REC}, v{reg}')
        else:
            out.append(f'v_add_u32 v{vVB + which}, v{vDL + win[which]}, v{vVB + which}')
        win[which] += 1
    return out


def rd_k(t):
    w_, o = rec_win(t >> 1)
    return bump('k', w_) + [f'ds_read_b128 {v(KM + 4 * (t % 2), 4)}, v{vKB} offset:{o + (t & 1) * 1024}']


def rd_kr(beta):
    w_, o = rec_win(beta)
    return bump('r', w_) + [f'ds_read_b128 {v(KRM + 4 * (beta % 2), 4)}, v{vKRB} offset:{o}']


def rd_v(t, i):
    w_, o = rec_win(t >> 1)
    f = 2 * (t & 1) + i
    return bump(f, w_) + [f'ds_read_b128 {v(VF + 8 * (t % 3) + 4 * i, 4)}, v{vVB + f} offset:{o}']


def qk2b(t, S):
    return f'v_mfma_f32_32x32x4_2b_bf16 {v(S, 32)}, {v(KRM + 4 * ((t >> 1) % 2) + 2 * (t & 1), 2)}, {v(QR, 2)}, 0'


def qkm(t, S, hd):
    return f'v_mfma_f32_32x32x16_bf16 {v(S + 16 * hd, 16)}, {v(KM + 4 * (t % 2), 4)}, {v(QB if hd else QA, 4)}, {v(S + 16 * hd, 16)}'


def pv(t, hd, i):
    return f'v_smfmac_f32_32x32x32_bf16 {v(OB if hd else OA, 16)}, {v(VF + 8 * (t % 3) + 4 * i, 4)}, {v(sbuf(t) + 16 * hd + 8 * i, 8)}, v{vIDX}'


def set_m(mA, mB, shift):
    return [f'v_permlane32_swap_b32 v{mA}, v{mB}', f'v_max_f32 v{mA}, v{mA}, v{mB}',
            f'v_sub_f32 v{mA}, {f2u(-shift)}, v{mA}', f'v_cvt_pk_bf16_f32 v{mB}, v{mA}, v{mA}',
            f'v_and_b32 v{mB}, 0xffff0000, v{mB}', f'v_sub_f32 v{mA}, v{mA}, v{mB}',
            f'v_cvt_pk_bf16_f32 v{QR + 1}, v{mB}, v{mA}']


E(rd_kr(0) + rd_k(0) + rd_k(1))
po = part_out(8)
E(qk2b(0, sbuf(0)))
E(po)
E(rd_v(0, 0) + rd_v(0, 1))
E(qkm(0, sbuf(0), 0))
E([f'v_mov_b32 v{OA + i}, 0' for i in range(8)])
E(qkm(0, sbuf(0), 1))
E([f'v_mov_b32 v{OA + i}, 0' for i in range(8, 32)])
for hd in range(2):
    S = sbuf(0) + 16 * hd
    E(f'v_max3_f32 v{hd}, v{S}, v{S + 1}, v{S + 2}')
    for i in range(3, 15, 2):
        E(f'v_max3_f32 v{hd}, v{hd}, v{S + i}, v{S + i + 1}')
    E(f'v_max_f32 v{hd}, v{hd}, v{S + 15}')
E(set_m(0, 1, OPT['shift']))
E(qk2b(0, sbuf(0)))
fin_setup = []
E(f'''s_and_b32 s{sT0}, s{sS}, 3
s_lshl_b32 s{sT1}, s{sM}, 2
s_add_u32 s4, s{sT0}, s{sT1}
s_lshr_b32 s5, s{sS}, 2
s_mul_i32 s6, s4, 36864
s_mul_i32 s{sT0}, s5, 288
s_add_u32 s6, s6, s{sT0}
s_mov_b32 s{SA}, s22
s_mov_b32 s{SA + 1}, s23
s_mov_b32 s{SA + 2}, 2359296
v_lshl_or_b32 v0, s{sW}, 6, v{vL}
v_mov_b32 v3, {OOB}''')
for u in range(5):
    E(f'''v_add_u32 v1, {256 * u}, v0
v_mul_u32_u24 v2, 1821, v1
v_lshrrev_b32 v2, 16, v2
v_mul_u32_u24 v2, 864, v2
v_lshl_add_u32 v{vOUT + u}, v1, 3, v2''')
    if u == 1:
        E(qkm(0, sbuf(0), 0))
    if u == 3:
        E(qkm(0, sbuf(0), 1))
E(f'''v_cmp_lt_u32 vcc, 127, v0
s_nop 1
v_cndmask_b32 v{vOUT + 4}, v{vOUT + 4}, v3, vcc
s_lshl_b32 s7, s5, 2
s_add_u32 s7, s7, s{sW}
s_mul_i32 s7, s7, {41 * 1024}
s_add_u32 s7, s7, {WS_WOT}
s_lshl_b32 s8, s4, 2
s_add_u32 s8, s8, s{sW}
s_mul_i32 s14, s8, {4 * 2304}
s_add_u32 s14, s14, {WS_O}
s_mul_i32 s8, s8, {4 * 36864}
s_mul_i32 s{sT0}, s5, 9216
s_add_u32 s8, s8, s{sT0}
s_add_u32 s8, s8, {WS_P}''')
E(rd_v(1, 0) + rd_v(1, 1) + rd_k(2) + rd_kr(1))
E(stamp('att_start'))


def pfrag(i, nu):
    n = 9 * i + nu
    return a(164 + 4 * n, 4) if n < NPA else v(PV + 4 * (n - NPA), 4)


extra = [[] for _ in range(64)]
items = []
for q in range(41):
    if q % 4 == 0 and q:
        items.append('s_add_u32 s7, s7, 4096')
    items.append(f'buffer_load_dwordx4 {a(4 * q, 4)}, v{vDMA2}, {srd(SWS)}, s7 offen offset:{1024 * (q % 4)} sc1')
NDEF = len(deferred)
T_FLAG = NDEF + OPT.get('tflag', 4)
T_POLL0 = T_FLAG + OPT.get('tpoll', 4)
T_POLL1 = T_POLL0 + 3
lastr = None
for i, (r, st) in enumerate(deferred):
    if r != lastr:
        extra[i].append(f's_mov_b32 s{sT2}, {WS_P + r * 4096}')
        lastr = r
    extra[i].append(st)
items += [f'buffer_load_dwordx2 {v(XR + 2 * u, 2)}, v{vOUT + u}, {srd(SX)}, s6 offen' for u in range(5)]
extra2 = [[] for _ in range(64)]
for i, x in enumerate(items):
    extra2[1 + (i * (T_POLL1 - 1)) // len(items)].append(x)
extra[T_FLAG] += flag_addr(vT0) + [f'v_mov_b32 v{vT1}, 1'] + barrier(['pst', 'kvB', 'kvC'], False) + \
    [f'buffer_store_dword v{vT1}, v{vT0}, {srd(SWS)}, s{sT1} offen sc1']
ldB = f'buffer_load_dword v{vT3}, v{vT2}, {srd(SWS)}, s9 offen sc1'
extra[T_POLL0] = [f'v_lshlrev_b32 v{vT2}, 2, v{vL}', f's_lshl_b32 s9, s{sM}, 8', f's_add_u32 s9, s9, {WS_FLAG}', ldB] + extra[T_POLL0]
extra[T_POLL1] += poll('L_pb', ldB, vT3, '1')
items = []
for i in range(4):
    for nu in range(9):
        if nu % 4 == 0:
            items.append(f's_add_u32 s{sT0}, s8, {i * 36864 + nu * 1024}')
        items.append(f'buffer_load_dwordx4 {pfrag(i, nu)}, v{vDMA2}, {srd(SWS)}, s{sT0} offen offset:{1024 * (nu % 4)} sc1')
for i, x in enumerate(items):
    extra[T_POLL1 + 1 + (i * (60 - T_POLL1 - 1)) // len(items)].append(x)

for t in range(64):
    S = sbuf(t)
    ex = lambda b, n: [f'v_exp_f32 v{S + b + i}, v{S + b + i}' for i in range(n)]
    nxt = t + 1 < 64
    if OPT['stamp'] == 4 and t % 8 == 0 and t:
        E(stamp(f't{t}'))
    if t > 0:
        E(pv(t - 1, 1, 1))
    E(ex(0, 4))
    if nxt:
        E(qk2b(t + 1, sbuf(t + 1)))
    E(ex(4, 8))
    E(pv(t, 0, 0))
    E(extra2[t])
    E(ex(12, 6))
    E(pv(t, 0, 1))
    E(ex(18, 4))
    if nxt:
        E(qkm(t + 1, sbuf(t + 1), 0))
    E(ex(22, 4))
    E(pv(t, 1, 0))
    E(extra[t])
    E(ex(26, 4))
    if nxt:
        E(qkm(t + 1, sbuf(t + 1), 1))
    E(ex(30, 2))
    rds = []
    E(P('waittag', (set(), True)))
    if t + 3 < 64:
        rds += rd_k(t + 3)
    if t + 2 < 64:
        rds += rd_v(t + 2, 0) + rd_v(t + 2, 1)
    if t % 2 == 1 and t + 3 < 64:
        rds += rd_kr((t + 3) >> 1)
    E(rds)
E(pv(63, 1, 1))
E(stamp('att_end'))

vOA_, vOB_ = 58, 59
E(o_addr(vOA_, vOB_, vT0))
for hd, O in enumerate((OA, OB)):
    E(f'v_add_f32 v{hd}, abs(v{O}), abs(v{O + 1})')
    for j in range(2, 10):
        E(f'v_add_f32 v{hd}, v{hd}, abs(v{O + j})')
E(f'''v_add_f32 v2, v{OA + 10}, v{OB + 10}
v_add_f32 v3, v0, v1
v_min_f32 v0, v0, v1
v_fma_f32 v2, v2, 4.0, v3
v_cmp_nlt_f32 vcc, {f2u(2.0 ** -100)}, v0
s_mov_b64 s[12:13], vcc
v_cmp_ngt_f32 vcc, {f2u(2.0 ** 122 if not OPT['force_fb'] else -1.0)}, v2
s_or_b64 vcc, vcc, s[12:13]
s_cbranch_scc1 L_fb
L_norm:''')
OP = 24
for hd, O in enumerate((OA, OB)):
    E(f'v_rcp_f32 v{hd}, v{O + 10}')
for hd, O in enumerate((OA, OB)):
    for j in range(10):
        E(f'v_mul_f32 v{O + j}, v{hd}, v{O + j}')
    for j in range(5):
        d = OP + 4 * hd + j if j < 4 else OP + 8 + hd
        E(f'v_cvt_pk_bf16_f32 v{d}, v{O + 2 * j}, v{O + 2 * j + 1}')
        E(f'v_min_u32 v{d}, -2, v{d}')
    E(f'buffer_store_dwordx4 {v(OP + 4 * hd, 4)}, v{vOA_}, {srd(SWS)}, s{sT0} offen offset:{1024 * hd} sc1')
E(f'buffer_store_dwordx2 {v(OP + 8, 2)}, v{vOB_}, {srd(SWS)}, s{sT0} offen offset:2048 sc1')
E(stamp('o_pub'))

SEL = 60
FA = 68
OF = 192
vOL, vOLR, vRW, vRR = 58, 59, 45, 34
E(f'''v_and_b32 v0, 15, v{vL}
v_lshrrev_b32 v1, 4, v{vL}
v_lshlrev_b32 v{vOL}, 4, v0
v_lshl_add_u32 v{vOL}, v1, 9, v{vOL}
v_mul_u32_u24 v{vOLR}, 2304, v1
v_lshl_add_u32 v{vOLR}, v0, 3, v{vOLR}
s_mul_i32 s{sT0}, s{sW}, 18944
v_mul_u32_u24 v{vRW}, 592, v0
v_lshl_add_u32 v{vRW}, v1, 4, v{vRW}
v_add_u32 v{vRW}, s{sT0}, v{vRW}
s_add_u32 s15, s14, {2 * 2304}''')
E(sel_setup(SEL, 0, 1))
oloads = []
for i in range(4):
    for tt in range(2):
        oloads.append(f'buffer_load_dwordx4 {v(OF + 8 * i + 4 * tt, 4)}, v{vOL}, {srd(SWS)}, s{14 + (i >> 1)} offen offset:{(i & 1) * 2304 + tt * 256} sc1')
for tt in range(2):
    oloads.append(f'buffer_load_dwordx2 {v(OF + 32 + 2 * tt, 2)}, v{vOLR}, {srd(SWS)}, s14 offen offset:{2048 + tt * 128} sc1')
misc = [f'v_lshl_or_b32 v0, s{sW}, 6, v{vL}']
for u in range(5):
    misc += [f'v_add_u32 v1, {256 * u}, v0', 'v_mul_u32_u24 v2, 1821, v1', 'v_lshrrev_b32 v2, 16, v2', 'v_add_u32 v2, v2, v1',
             f'v_lshlrev_b32 v{vRR + u}, 4, v2']
cnt = 0
for i in range(4):
    for nu in range(9):
        for tt in range(2):
            acc = FA + 8 * nu + 4 * tt
            E(mf(acc, v(SEL + 2 * (tt ^ ((i & ROT) >> 1)), 4), pfrag(i, nu), i == 0))
            if cnt < len(misc):
                E(misc[cnt])
            if 40 <= cnt < 50:
                E(oloads[cnt - 40])
            cnt += 1
E('s_barrier')
chk = [f'v_max3_u32 v0, v{OF}, v{OF + 1}, v{OF + 2}']
for i in range(3, 35, 2):
    chk.append(f'v_max3_u32 v0, v0, v{OF + i}, v{OF + i + 1}')
chk += [f'v_max_u32 v0, v0, v{OF + 35}', 'v_cmp_eq_u32 vcc, -1, v0']
E(chk)
E(['s_cmp_eq_u64 vcc, 0', 's_cbranch_scc0 L_pc_slow', 'L_pc_ok:'])
side.append(f'''L_pc_slow:
    s_mov_b32 s{sCNT}, 0
L_pc_loop:
    ''' + '\n    '.join(oloads) + '''
    s_waitcnt vmcnt(0)
    ''' + '\n    '.join(chk) + f'''
    s_add_u32 s{sCNT}, s{sCNT}, 1
    s_nop 4
    s_cmp_eq_u64 vcc, 0
    s_cbranch_scc1 L_pc_ok
    s_cmp_lt_u32 s{sCNT}, 0x4000
    s_cbranch_scc1 L_pc_loop
    s_branch L_pc_ok
''')
E(stamp('o_got'))


def red_write(nu, tt):
    return f'ds_write_b128 v{vRW}, {v(FA + 8 * nu + 4 * tt, 4)} offset:{tt * 16 * 592 + nu * 64}'


def rem_mf(k):
    nu, tt = k >> 1, k & 1
    acc = FA + 4 * k
    return f'v_mfma_f32_16x16x16_bf16 {v(acc, 4)}, {a(144 + 2 * nu, 2)}, {v(OF + 32 + 2 * tt, 2)}, {v(acc, 4)}'


pend = []
E([rem_mf(k) for k in range(7)])
for nu in range(9):
    for tt in range(2):
        acc = FA + 8 * nu + 4 * tt
        for i in range(4):
            E(mf(acc, a(4 * (4 * nu + i), 4), v(OF + 8 * i + 4 * tt, 4), False))
        if 2 * nu + tt + 7 < 18:
            E(rem_mf(2 * nu + tt + 7))
        pend.append((nu, tt))
        if len(pend) > 2:
            E(red_write(*pend.pop(0)))
for x in pend:
    E(red_write(*x))
E(barrier())
RD = 140
for u in range(5):
    for src in range(4):
        E(f'ds_read_b128 {v(RD + 16 * u + 4 * src, 4)}, v{vRR + u} offset:{src * 18944}')
for u in range(5):
    R = RD + 16 * u
    E([f'v_lshlrev_b32 v0, 16, v{XR + 2 * u}', f'v_and_b32 v1, 0xffff0000, v{XR + 2 * u}',
       f'v_lshlrev_b32 v2, 16, v{XR + 2 * u + 1}', f'v_and_b32 v3, 0xffff0000, v{XR + 2 * u + 1}'])
    for src in range(4):
        E([f'v_pk_add_f32 v[0:1], v[0:1], {v(R + 4 * src, 2)}', f'v_pk_add_f32 v[2:3], v[2:3], {v(R + 4 * src + 2, 2)}'])
    E([f'v_cvt_pk_bf16_f32 v{R}, v0, v1', f'v_cvt_pk_bf16_f32 v{R + 1}, v2, v3',
       f'buffer_store_dwordx2 {v(R, 2)}, v{vOUT + u}, {srd(SA)}, s6 offen'])
if OPT['stamp']:
    E('s_waitcnt vmcnt(0)')
    E(stamp('end'))
    E(f'''s_lshl_b32 s{sT0}, s{sM}, 4
s_add_u32 s{sT0}, s{sT0}, s{sS}
s_lshl_b32 s{sT0}, s{sT0}, 2
s_add_u32 s{sT0}, s{sT0}, s{sW}
s_lshl_b32 s{sT0}, s{sT0}, 8
s_add_u32 s{sT0}, s{sT0}, {WS_STAMP2}
v_lshlrev_b32 v0, 2, v{vL}
buffer_store_dword v{vSTAMP}, v0, {srd(SWS)}, s{sT0} offen''')
if 'diag' in OPT:
    E(stamp('fin'))
    E(f'''s_nop 4
v_readlane_b32 s4, v{vSTAMP}, 0
v_readlane_b32 s5, v{vSTAMP}, 1
v_readlane_b32 s6, v{vSTAMP}, 2
s_nop 4
s_sub_u32 s6, s6, s5
s_lshl_b32 s6, s6, 2
s_add_u32 s6, s6, 7000
s_min_u32 s6, s6, 30000
s_cmp_eq_u32 s{sM}, {OPT.get('diagm', 5)}
s_cselect_b32 s6, s6, 0
L_spin:
s_memrealtime s[2:3]
s_waitcnt lgkmcnt(0)
s_sub_u32 s2, s2, s4
s_cmp_lt_u32 s2, s6
s_cbranch_scc1 L_spin''')
E('s_endpgm')
if 'drop' in OPT:
    import re
    n0_ = len(p.ins)
    p.ins = [i for i in p.ins if not re.search(OPT['drop'], i.text)]
    print('dropped', n0_ - len(p.ins))
if 'sub' in OPT:
    import re
    pat, rep_ = OPT['sub'].split('->')
    p.ins = [Ins(re.sub(pat, rep_, i.text), i.tag) if (not i.pseudo and re.search(pat, i.text)) else i for i in p.ins]
main = p.finalize()

q = Prog()
F = q.e
fK, fR, fV, fD = 60, 61, 62, 66
back = (L_KV0 - 13 * REC) & 0xffffffff


def fb_addr():
    out = [f'v_add_u32 v{fK}, {back}, v{vKB}', f'v_add_u32 v{fR}, {back}, v{vKRB}',
           f'v_add_u32 v2, v{vDL}, v{vDL + 1}']
    out += [f'v_sub_u32 v{fV + f}, v{vVB + f}, v2' for f in range(4)]
    out += [f's_mov_b32 s{sCNT}, 0']
    return out


def fb_next(label):
    return [f's_add_u32 s{sCNT}, s{sCNT}, 1', f's_cmp_eq_u32 s{sCNT}, 10',
            f's_mov_b32 s12, {REC}', f's_cmov_b32 s12, {(-(L_KV0 + 9 * REC)) & 0xffffffff}',
            f'v_add_u32 v{fK}, s12, v{fK}', f'v_add_u32 v{fR}, s12, v{fR}',
            f'v_mul_lo_u32 v2, v{fD}, s12'] + [f'v_add_u32 v{fV + f}, v2, v{fV + f}' for f in range(4)] + \
           [f's_cmp_lt_u32 s{sCNT}, 32', 's_nop 15', f's_cbranch_scc1 {label}']


def fb_qk(tile):
    return [f'ds_read_b128 {v(KM, 4)}, v{fK} offset:{1024 * tile}', f'ds_read_b128 {v(KRM, 4)}, v{fR}',
            f'v_mfma_f32_32x32x4_2b_bf16 {v(S0, 32)}, {v(KRM + 2 * tile, 2)}, {v(QR, 2)}, 0',
            f'v_mfma_f32_32x32x16_bf16 {v(S0, 16)}, {v(KM, 4)}, {v(QA, 4)}, {v(S0, 16)}',
            f'v_mfma_f32_32x32x16_bf16 {v(S0 + 16, 16)}, {v(KM, 4)}, {v(QB, 4)}, {v(S0 + 16, 16)}']


F('L_fb:')
F(['s_nop 15', f'v_min_u32 v{fD}, 1, v{vDL + 1}', f'v_mov_b32 v{QR + 1}, 0', 'v_mov_b32 v0, 0xff800000', 'v_mov_b32 v1, 0xff800000'])
F(fb_addr())
F('L_fb1:')
for tile in range(2):
    F(fb_qk(tile))
    for hd in range(2):
        for i in range(0, 16, 2):
            F(f'v_max3_f32 v{hd}, v{hd}, v{S0 + 16 * hd + i}, v{S0 + 16 * hd + i + 1}')
F(fb_next('L_fb1'))
F(set_m(0, 1, 0.0))
F([f'v_mov_b32 v{OA + i}, 0' for i in range(32)])
F(fb_addr())
F('L_fb2:')
for tile in range(2):
    F(fb_qk(tile))
    F([f'ds_read_b128 {v(VF + 4 * i, 4)}, v{fV + 2 * tile + i}' for i in range(2)])
    F([f'v_exp_f32 v{S0 + i}, v{S0 + i}' for i in range(32)])
    for hd in range(2):
        for i in range(2):
            F(f'v_smfmac_f32_32x32x32_bf16 {v(OB if hd else OA, 16)}, {v(VF + 4 * i, 4)}, {v(S0 + 16 * hd + 8 * i, 8)}, v{vIDX}')
F(fb_next('L_fb2'))
F(['s_nop 15', 's_branch L_norm'])
fb = q.finalize(False)

hdr = open('cdna_kernels/' + NAME + '.s.ref').read().split('; Override launch')[0]
text = hdr + f'''; Generated by dev/gen.py: one persistent workgroup per CU (128 tokens x 1/16 of the FFN width x 2 heads).
; @launch grid=(256,1,1) block=(256,1,1) lds=163840
.amdgcn_target "amdgcn-amd-amdhsa--gfx950"
.text
.globl {NAME}_kernel
.p2align 8
.type {NAME}_kernel,@function
{NAME}_kernel:
{main}
{''.join(side)}
{fb}
L_end:
    s_endpgm
.section .rodata,"a"
.p2align 6
.amdhsa_kernel {NAME}_kernel
  .amdhsa_next_free_vgpr 512
  .amdhsa_next_free_sgpr 102
  .amdhsa_accum_offset 256
  .amdhsa_group_segment_fixed_size 0
  .amdhsa_kernarg_size 96
  .amdhsa_user_sgpr_count 2
  .amdhsa_user_sgpr_kernarg_segment_ptr 1
  .amdhsa_system_sgpr_workgroup_id_x 1
.end_amdhsa_kernel
'''
open(sys.argv[1], 'w').write(text)
open(sys.argv[1] + '.stamps', 'w').write(' '.join(STAMPS))
print('bytes of source', len(text))
```

```python
class MB:
    def __init__(self): self.hdr=[]; self.body=[]
    def kernel(self, name, segs, block=256, grid=256, lds=0, div=1, flush=0, vgpr=256, agpr=0, pre="", note=""):
        n=len(segs)
        acc=(vgpr+3)//4*4
        t=f"""
.text
.globl {name}
.p2align 8
.type {name},@function
{name}:
    s_load_dwordx2 s[4:5], s[0:1], 0
    s_load_dwordx2 s[6:7], s[0:1], 8
    s_load_dwordx2 s[8:9], s[0:1], 16
    v_lshrrev_b32 v1, 6, v0
    s_nop 1
    v_readfirstlane_b32 s3, v1
    s_waitcnt lgkmcnt(0)
{pre}
    s_waitcnt lgkmcnt(0) vmcnt(0)
    s_barrier
    s_memrealtime s[96:97]
    s_memtime s[80:81]
    s_waitcnt lgkmcnt(0)
"""
        for i,sg in enumerate(segs):
            t+=sg+f"\n    s_memtime s[{82+2*i}:{83+2*i}]\n    s_waitcnt lgkmcnt(0)\n"
        t+="    s_memrealtime s[98:99]\n    s_waitcnt lgkmcnt(0) vmcnt(0)\n    s_nop 15\n    s_nop 15\n"
        for i in range(7):
            if i<n:
                t+=f"    s_sub_u32 s100, s{82+2*i}, s{80+2*i}\n    v_mov_b32 v{8+i}, s100\n"
            else:
                t+=f"    v_mov_b32 v{8+i}, 0\n"
        t+=f"""    s_sub_u32 s100, s98, s96
    v_mov_b32 v15, s100
    s_mul_i32 s100, s2, {block//64}
    s_add_u32 s100, s100, s3
    s_lshl_b32 s100, s100, 5
    v_mov_b32 v6, s100
    v_mbcnt_lo_u32_b32 v7, -1, 0
    v_mbcnt_hi_u32_b32 v7, -1, v7
    v_cmp_eq_u32 vcc, 0, v7
    s_and_saveexec_b64 s[24:25], vcc
    global_store_dwordx4 v6, v[8:11], s[4:5]
    global_store_dwordx4 v6, v[12:15], s[4:5] offset:16
    s_waitcnt vmcnt(0)
    s_endpgm
.section .rodata,"a"
.p2align 6
.amdhsa_kernel {name}
  .amdhsa_next_free_vgpr {acc+agpr}
  .amdhsa_next_free_sgpr 102
  .amdhsa_accum_offset {acc}
  .amdhsa_group_segment_fixed_size 0
  .amdhsa_kernarg_size 32
  .amdhsa_user_sgpr_count 2
  .amdhsa_user_sgpr_kernarg_segment_ptr 1
  .amdhsa_system_sgpr_workgroup_id_x 1
.end_amdhsa_kernel
"""
        self.body.append(t)
    def write(self, fn):
        open(fn,"w").write("\n".join(self.hdr)+"\n.amdgcn_target \"amdgcn-amd-amdhsa--gfx950\"\n"+"".join(self.body))
def rep(f,n): return "\n".join(f(i) for i in range(n))
def loop(label, body, iters, sreg="s40"):
    return f"""    s_mov_b32 {sreg}, {iters}
.p2align 6
{label}:
{body}
    s_sub_u32 {sreg}, {sreg}, 1
    s_cmp_lg_u32 {sreg}, 0
    s_cbranch_scc1 {label}
"""
```

```python
from mblib import *
mb=MB()
init = """    s_mov_b32 s12, s6
    s_mov_b32 s13, s7
    s_mov_b32 s14, 0x100000
    s_mov_b32 s15, 0x00020000
    s_mov_b32 s50, 1.0
    v_cvt_f32_u32 v2, v0
    v_mul_f32 v2, 0x3a000000, v2
"""+"\n".join(f"    v_mov_b32 v{i}, v2" for i in range(8, 128))+"\n    v_lshlrev_b32 v3, 4, v0\n    v_and_b32 v4, 63, v0\n    v_lshlrev_b32 v4, 3, v4\n    s_lshl_b32 m0, s3, 10\n"
def mf(j): return f"    v_mfma_f32_16x16x32_bf16 v[{96+4*((j//2)%4)}:{99+4*((j//2)%4)}], v[8:11], v[12:15], v[{96+4*((j//2)%4)}:{99+4*((j//2)%4)}]\n"
R=lambda k: f"    ds_read_b64_tr_b16 v[{40+2*k}:{41+2*k}], v4 offset:{32768+k*512}\n"
V=lambda d,s: f"    v_mul_f32 v{d}, v{s}, v72\n"
F=lambda d,s: f"    v_fma_f32 v{d}, v{s}, s50, s50\n"
K=lambda d,s: f"    v_fmaak_f32 v{d}, v{s}, v{s}, 0x40490fdb\n"
X=lambda d,s: f"    v_exp_f32 v{d}, v{s}\n"
C=lambda d: f"    v_cvt_pk_bf16_f32 v{d}, v70, v71\n"
W="    s_waitcnt lgkmcnt(8)\n"
D="    buffer_load_dwordx4 v3, s[12:15], 0 offen lds\n"
S="    s_add_u32 s40, s40, 0\n".replace("s40","s44")
SM=lambda j: f"    v_smfmac_f32_32x32x32_bf16 v[{96+16*(j%2)}:{111+16*(j%2)}], v[8:11], v[16:23], v12\n"
M32=lambda j: f"    v_mfma_f32_32x32x16_bf16 v[{96+16*(j%2)}:{111+16*(j%2)}], v[8:11], v[12:15], v[{96+16*(j%2)}:{111+16*(j%2)}]\n"
M2=lambda j: f"    v_mfma_f32_32x32x4_2b_bf16 v[96:127], v[8:9], v[12:13], 0\n"
R4=lambda k: f"    ds_read_b128 v[{40+4*k}:{43+4*k}], v3 offset:{k*4096}\n"
LD="    buffer_load_dwordx4 v[56:59], v3, s[12:15], 0 offen\n"
ST="    buffer_store_dwordx4 v[60:63], v5, s[16:19], 0 offen sc1\n"
init+="    s_mov_b32 s16, s8\n    s_mov_b32 s17, s9\n    s_mov_b32 s18, 0x1000000\n    s_mov_b32 s19, 0x00020000\n    s_lshl_b32 s20, s2, 12\n    v_add_u32 v5, s20, v3\n"
def t(name, mfn, pre_, post, ne, every=1):
    body="".join((pre_ if j%every==0 else "")+mfn(j)+(post if j%every==0 else "")+"".join(X(74+i,30+i) for i in range(ne)) for j in range(48))
    mb.kernel(name,[loop("L"+name, body+"    s_waitcnt vmcnt(4)\n", 40)+"    s_waitcnt lgkmcnt(0) vmcnt(0)\n"],block=256,div=40*48/every,pre=init,lds=65536,vgpr=128,note=f"per {every} mfma")
for nm,fn,ne in (("sm",SM,4),("m32",M32,4),("m2b",M2,8)):
    t(nm+"_0",fn,"","",ne)
    t(nm+"_R",fn,"",R4(0),ne)
    t(nm+"_S",fn,"",S,ne)
    t(nm+"_SS",fn,"",S+S,ne)
    t(nm+"_SSS",fn,"",S+S+S,ne)
    t(nm+"_SR",fn,"",S+R4(0),ne)
    t(nm+"_RR",fn,"",R4(0)+R4(1),ne)
    t(nm+"_preR",fn,R4(0),"",ne)
    t(nm+"_0x8",fn,"","",ne,8)
    t(nm+"_LD",fn,"",LD,ne,8)
    t(nm+"_D",fn,"",D,ne,8)
    t(nm+"_ST",fn,"",ST,ne,8)
    t(nm+"_RLD",fn,"",R4(0)+LD,ne,8)
    t(nm+"_LDLD",fn,"",LD+LD,ne,8)
mb.write("t19.s")
```
